```python
import torch

def _softmax(x, axis=-1):
    return torch.softmax(x, dim=axis)
def _gelu(x):
    return torch.nn.functional.gelu(x, approximate="tanh")
def _silu(x):
    return torch.nn.functional.silu(x)
def _sigmoid(x):
    return torch.sigmoid(x)
def _layernorm(x, axis=-1, eps=1e-5):
    m = x.mean(dim=axis, keepdim=True)
    v = x.var(dim=axis, keepdim=True, unbiased=False)
    return (x - m) / torch.sqrt(v + eps)
def _scatter_add(tgt, idx, src, axis=0):
    return tgt.clone().index_add_(axis, idx, src)
def _segment_sum(src, seg, n):
    out = torch.zeros((n,) + src.shape[1:], dtype=src.dtype)
    return out.index_add_(0, seg, src)
def _pad(x, pw):
    flat = tuple(v for pair in reversed(pw) for v in pair)
    return torch.nn.functional.pad(x, flat)

kernel_name = 'sequential_preLN__sliding_block_cached__dense_activation_squared_relu__decode'

def setup_inputs():

    _w = (lambda a: (lambda t: t.to(torch.bfloat16) if t.is_floating_point() else t)(torch.as_tensor(a)))
    def _A_setup():
        B, Sq, D = 1, 1, 640
        Hq, Hkv, Sk, Dh = 32, 32, 32768, 192
        assert Hq % Hkv == 0, (Hq, Hkv)
        return {
            "x": _w((lambda *s: torch.randn(*s, dtype=torch.bfloat16) * 0.05)(B, Sq, D)),
            "k_cache": _w((lambda *s: torch.randn(*s, dtype=torch.bfloat16) * 3.2)(B, Hkv, Sk, Dh)),
            "v_cache": _w((lambda *s: torch.randn(*s, dtype=torch.bfloat16) * 0.4)(B, Hkv, Sk, Dh)),
            "wq": _w((lambda *s: torch.randn(*s, dtype=torch.bfloat16) * 3.2)(D, Hq * Dh) * (D ** -0.5)),
            "wo": _w((lambda *s: torch.randn(*s, dtype=torch.bfloat16) * 0.4)(Hq * Dh, D) * ((Hq * Dh) ** -0.5)),
        }
    _A_in = _A_setup()

    def _B_setup():
        B, S, D, F = 1, 1, 640, 1536
        return {
            "x": _w((lambda *s: torch.randn(*s, dtype=torch.bfloat16) * 0.05)(B, S, D)),
            "w1": _w((lambda *s: torch.randn(*s, dtype=torch.bfloat16) * 0.05)(D, F)),
            "b1": _w((lambda *s: torch.randn(*s, dtype=torch.bfloat16) * 0.8)(F)),
            "w2": _w((lambda *s: torch.randn(*s, dtype=torch.bfloat16) * 0.05)(F, D)),
            "b2": _w((lambda *s: torch.randn(*s, dtype=torch.bfloat16) * 3.2)(D)),
        }
    _B_in = _B_setup()

    return {
        "A_x": _A_in["x"],
        "A_k_cache": _A_in["k_cache"],
        "A_v_cache": _A_in["v_cache"],
        "A_wq": _A_in["wq"],
        "A_wo": _A_in["wo"],
        "B_x": _B_in["x"],
        "B_w1": _B_in["w1"],
        "B_b1": _B_in["b1"],
        "B_w2": _B_in["w2"],
        "B_b2": _B_in["b2"],
    }

def reference(A_x, A_k_cache, A_v_cache, A_wq, A_wo, B_x, B_w1, B_b1, B_w2, B_b2):
    def _A_ref(x, k_cache, v_cache, wq, wo):
        B, Sq, D = x.shape
        Hq, Dh = 32, 192
        Hkv, Sk = k_cache.shape[1], k_cache.shape[2]
        W = min(4096, max(256, Sk // 4))
        rep = Hq // Hkv
        q = (lambda x, *d: x.permute(*d))((x @ wq).reshape(B, Sq, Hq, Dh), 0, 2, 1, 3)
        k = (lambda x, n, axis: torch.repeat_interleave(x, n, dim=axis))(k_cache[:, :, Sk - W:, :], rep, axis=1)
        v = (lambda x, n, axis: torch.repeat_interleave(x, n, dim=axis))(v_cache[:, :, Sk - W:, :], rep, axis=1)
        scores = torch.einsum("bhqd,bhkd->bhqk", q, k) * (Dh ** -0.5)
        p = _softmax(scores, axis=-1)
        o = torch.einsum("bhqk,bhkd->bhqd", p, v)
        return (lambda x, *d: x.permute(*d))(o, 0, 2, 1, 3).reshape(B, Sq, Hq * Dh) @ wo

    def _B_ref(x, w1, b1, w2, b2):
        h = torch.einsum("bsd,df->bsf", x, w1) + b1
        zero = torch.zeros_like(h)
        r = torch.where(h > zero, h, zero)
        h = r * r
        out = torch.einsum("bsf,fd->bsd", h, w2) + b2
        return out

    x = A_x
    h = x + _A_ref(_layernorm(x, axis=-1), A_k_cache, A_v_cache, A_wq, A_wo)
    h2 = h + _B_ref(_layernorm(h, axis=-1), B_w1, B_b1, B_w2, B_b2)
    return h2
```

```python
import re

TRANS = ('v_exp_f32', 'v_log_f32', 'v_rcp_f32', 'v_rsq_f32', 'v_sqrt_f32', 'v_sin_f32', 'v_cos_f32', 'v_rcp_iflag_f32')
REG_RE = re.compile(r'^(-|abs\()?([vsa])(?:(\d+)|\[(\d+):(\d+)\])\)?$')


def regs_of(tok):
    tok = tok.strip()
    if tok in ('vcc', 'vcc_lo', 'vcc_hi'):
        return {'vcc'}
    if tok in ('exec', 'exec_lo', 'exec_hi'):
        return {'exec'}
    if tok == 'm0':
        return {'m0'}
    m = REG_RE.match(tok)
    if not m:
        return set()
    k = m.group(2)
    if m.group(3) is not None:
        return {k + m.group(3)}
    return {k + str(i) for i in range(int(m.group(4)), int(m.group(5)) + 1)}


class Ins:
    def __init__(self, text):
        self.text = text
        t = text.split(';')[0].strip()
        self.label = t[:-1] if t.endswith(':') else None
        self.directive = t.startswith('.') and not self.label
        self.empty = (t == '') or self.directive
        self.op = ''
        self.defs, self.uses = set(), set()
        self.srcc = set()
        self.srcab = set()
        self.target = None
        if self.label or self.empty:
            return
        parts = t.split(None, 1)
        op = self.op = parts[0]
        rest = parts[1] if len(parts) > 1 else ''
        rest_ops = re.sub(r'\b(quad_perm|op_sel|op_sel_hi|neg_lo|neg_hi):\[[^\]]*\]', '', rest)
        toks = [x.strip() for x in rest_ops.split(',')] if rest_ops.strip() else []
        if toks:
            toks[-1] = toks[-1].split()[0] if toks[-1].split() else ''
        R = [regs_of(x) for x in toks]
        U = lambda l: set().union(*l) if l else set()
        self.valu = op.startswith('v_') and not op.startswith('v_mfma')
        self.mfma = op.startswith('v_mfma')
        self.vmem = op.startswith(('buffer_', 'global_'))
        self.ds = op.startswith('ds_')
        self.salu = op.startswith('s_')
        self.dpp = op.endswith('_dpp')
        self.trans = any(op.startswith(x) for x in TRANS)
        self.dl = op.startswith('v_dot')
        self.ldsdma = self.vmem and re.search(r'\blds\b', rest) is not None
        self.wide_store = self.vmem and 'store' in op and op.endswith(('x3', 'x4'))
        self.store_data = set()
        self.dppsrc = set()
        if self.mfma:
            self.defs = R[0]
            self.srcab = R[1] | R[2]
            self.srcc = R[3]
            self.uses = self.srcab | self.srcc
        elif self.valu:
            if op.startswith('v_permlane') and 'swap' in op:
                self.defs = R[0] | R[1]
                self.uses = R[0] | R[1]
            elif op.startswith(('v_add_co', 'v_sub_co', 'v_addc_co', 'v_subb_co')):
                self.defs = R[0] | R[1]
                self.uses = U(R[2:])
            elif op == 'v_nop':
                pass
            else:
                self.defs = R[0]
                self.uses = U(R[1:])
                if op.startswith(('v_fmac', 'v_dot2c', 'v_writelane')) or self.dpp:
                    self.uses |= R[0]
                if self.dpp:
                    self.dppsrc = self.uses
                if self.dl:
                    self.srcab = R[1] | R[2]
                    self.srcc = R[3] if len(R) > 3 else R[0]
        elif self.vmem:
            if op in ('buffer_inv', 'buffer_wbl2'):
                pass
            elif 'load' in op and not self.ldsdma:
                self.defs = R[0]
                self.uses = U(R[1:])
                if 'd16' in op:
                    self.uses |= R[0]
            else:
                self.uses = U(R)
                if 'store' in op:
                    self.store_data = R[0] if op.startswith('buffer_') else R[1]
                if 'atomic' in op and 'sc0' in rest:
                    self.defs = R[0]
            if self.ldsdma:
                self.uses |= {'m0'}
        elif self.ds:
            if op.startswith(('ds_read', 'ds_bpermute', 'ds_permute', 'ds_swizzle')) or '_rtn' in op:
                self.defs = R[0]
                self.uses = U(R[1:])
            else:
                self.uses = U(R)
        elif self.salu:
            if op.startswith(('s_cbranch', 's_branch')):
                self.target = toks[0]
            elif op.startswith(('s_cmp', 's_bitcmp', 's_waitcnt', 's_barrier', 's_nop', 's_sleep', 's_setprio', 's_endpgm')):
                self.uses = U(R)
            else:
                self.defs = R[0]
                self.uses = U(R[1:])
                if 'saveexec' in op:
                    self.defs |= {'exec'}

    def states(self):
        if self.label or self.empty:
            return 0
        if self.op == 's_nop':
            return int(self.text.split(';')[0].split()[1], 0) + 1
        return 1


def isv(s):
    return {r for r in s if r[0] in 'va' and r != 'vcc'}


def iss(s):
    return {r for r in s if r[0] == 's' or r == 'vcc'}


def need(p, c):
    n = 0
    if p.valu:
        vd = isv(p.defs)
        sd = iss(p.defs)
        if c.valu and c.dpp and vd & c.dppsrc:
            n = max(n, 2)
        if c.op.startswith(('v_readlane', 'v_readfirstlane')) and vd & c.uses:
            n = max(n, 1)
        if c.op.startswith('v_permlane') and vd & c.uses:
            n = max(n, 2)
        if c.mfma and vd & c.uses:
            n = max(n, 3 if p.dl else 2)
        if p.trans and c.valu and not c.trans and vd & c.uses:
            n = max(n, 1)
        if sd:
            if c.valu and sd & c.uses:
                n = max(n, 4 if c.op.startswith(('v_readlane', 'v_writelane')) else 2)
            if c.vmem and sd & c.uses:
                n = max(n, 5)
        if p.dl:
            if c.op == p.op:
                if vd & c.srcab:
                    n = max(n, 3)
            elif (c.valu or c.vmem or c.ds) and vd & (c.uses | c.defs):
                n = max(n, 3)
    if p.mfma:
        assert '16x16x32' in p.op, p.op
        d = p.defs
        if c.mfma:
            if d & c.srcab:
                n = max(n, 8)
            if d & c.srcc and d != c.srcc:
                n = max(n, 6)
            if d & c.defs and not (d & c.srcc):
                n = max(n, 6)
        elif (c.valu or c.vmem or c.ds) and d & (c.uses | c.defs):
            n = max(n, 8)
        if c.valu and p.srcc & c.defs:
            n = max(n, 3)
    if p.salu and 'm0' in p.defs and c.ldsdma:
        n = max(n, 1)
    if p.wide_store and p.store_data & c.defs:
        n = max(n, 2)
    return n


class Asm:
    def __init__(self):
        self.lines = []

    def __call__(self, text):
        for l in text.split('\n'):
            l = l.strip()
            if l:
                self.lines.append(l)

    def finalize(self):
        ins = [Ins(l) for l in self.lines]
        MAXD = 9
        i = 0
        inserted = 0
        while i < len(ins):
            c = ins[i]
            if c.label or c.empty or c.op == 's_nop':
                i += 1
                continue
            labels = {x.label: k for k, x in enumerate(ins) if x.label}
            jumps = {}
            for k, x in enumerate(ins):
                if x.target:
                    jumps.setdefault(labels[x.target], []).append(k)
            worst = 0
            stack = [(i - 1, 0, False)]
            seen = {}
            while stack:
                k, dist, via_jump = stack.pop()
                if k < 0 or dist >= MAXD:
                    continue
                if seen.get((k, via_jump), 99) <= dist:
                    continue
                seen[(k, via_jump)] = dist
                p = ins[k]
                if p.label:
                    for j in jumps.get(k, []):
                        stack.append((j, dist, True))
                    stack.append((k - 1, dist, False))
                    continue
                if p.empty:
                    stack.append((k - 1, dist, False))
                    continue
                if p.op in ('s_branch', 's_endpgm') and not via_jump:
                    continue
                worst = max(worst, need(p, c) - dist)
                stack.append((k - 1, dist + p.states(), False))
            if worst > 0:
                ins.insert(i, Ins(f's_nop {worst - 1}'))
                inserted += 1
                i += 1
            i += 1
        out = []
        for x in ins:
            out.append(x.text if (x.label or x.directive) else '    ' + x.text)
        return '\n'.join(out) + '\n'
```

```python
import sys
from asmlib import Asm

NAME = 'sequential_preLN__sliding_block_cached__dense_activation_squared_relu__decode'
KN = NAME + '_kernel'

DEFAULT = dict(
    depth=4,
    init_k=2,
    flag_at=8,
    boost=1,
    stamps=False,
    nt='nt', wnt='nt',
    xcdmap=False,
)

REC = 1280
QP_O, OP_O, ML_O = 0, 768, 1152
YP_OFF = 256 * REC
H1_OFF = YP_OFF + 8 * 2560
WS_USED = H1_OFF + 3072
STAMP_OFF = 32 << 20

WT = 0
QB = 49152
MLB = QB + 384
HB = MLB + 512
ZB = HB + 1280
STB = ZB + 2048
CSB = STB + 64
REDB = CSB + 512
RED = 0
RSTR = 832
LDS_BYTES = REDB + 22 * RSTR

ROLES = [(0, 20), (20, 26), (26, 31)]
STAMPS = {0: 'start', 1: 'kernargs', 2: 'wq done', 3: 'q published', 4: 'flags ok', 5: 'q ready', 6: 'scores done',
          7: 'P ready', 8: 'PV done', 9: 'o published', 10: 'weights landed', 11: 'poll ok', 12: 'published', 13: 'clear acked', 14: 'dma issued'}
SPIN = 1 << 17
DPPF = 'row_mask:0xf bank_mask:0xf'


def vr(a, n=4):
    return f'v[{a}:{a + n - 1}]'


def gen(**kw):
    P = dict(DEFAULT)
    P.update(kw)
    A = Asm()
    D = P['depth']
    NT = P['nt']
    WNT = P['wnt']

    sW, sH, sI, sT, sXX = 's3', 's4', 's5', 's6', 's7'
    sKV, sOff, sRole, sRec, sM, sSpin = 's10', 's11', 's12', 's13', 's14', 's15'
    sA, sB_, sC, sD_ = 's16', 's17', 's18', 's19'
    X, K, V, WQ, WS, DBG, WTS, BI, OUT = ('s[20:23]', 's[24:27]', 's[28:31]', 's[32:35]', 's[36:39]',
                                          's[40:43]', 's[44:47]', 's[48:51]', 's[52:55]')
    sStep, sLog2e, sIdx = 's66', 's67', 's68'
    sMk = 's[8:9]'
    vL, vKo, vVo, vQo = 'v0', 'v1', 'v2', 'v3'
    MK = 4
    QOP = 8
    S = 20
    ACC = 28
    T = 44
    vRedW, vRedR, vWo = 'v60', 'v61', 'v62'
    KR, VR = 64, 160

    issued = []

    def load(text, tag):
        A(text)
        issued.append(tag)

    def wait(tag):
        n = len(issued) - 1 - issued.index(tag)
        A(f's_waitcnt vmcnt({n})')

    nstamp = [0]

    def stamp(k):
        if P['stamps']:
            A(f's_memrealtime s[{70 + 2 * k}:{71 + 2 * k}]')

    def dump():
        if P['stamps']:
            A('s_mov_b64 exec, -1')
            A('s_waitcnt lgkmcnt(0)')
            A('v_mov_b32 v45, 0')
            for k in range(15):
                A(f'v_writelane_b32 v45, s{70 + 2 * k}, {k}')
            A('s_getreg_b32 s16, hwreg(HW_REG_XCC_ID)')
            A('v_writelane_b32 v45, s16, 15')
            A(f's_lshl_b32 s16, s2, 3\ns_add_u32 s16, s16, {sW}\ns_lshl_b32 s16, s16, 6\ns_add_u32 s16, s16, {STAMP_OFF}')
            A(f'v_lshlrev_b32 v46, 2, {vL}\nv_add_u32 v46, s16, v46')
            A('s_mov_b64 exec, 0xffff')
            A(f'buffer_store_dword v45, v46, {WS}, 0 offen')

    def end():
        dump()
        A('s_endpgm')

    def reduce64(op, regs):
        for m in ('quad_perm:[1,0,3,2] ' + DPPF, 'quad_perm:[2,3,0,1] ' + DPPF, 'row_half_mirror ' + DPPF,
                  'row_mirror ' + DPPF, 'row_bcast:15 row_mask:0xa bank_mask:0xf', 'row_bcast:31 row_mask:0xc bank_mask:0xf'):
            for r in regs:
                A(f'{op}_dpp {r}, {r}, {r} {m}')

    def rbf(dst, src):
        A(f'v_cvt_pk_bf16_f32 {dst}, {src}, {src}')
        A(f'v_and_b32 {dst}, 0xffff0000, {dst}')

    def sentinel_check(regs, tmp):
        regs = list(regs)
        if len(regs) == 2:
            A(f'v_max_u32 {tmp}, {regs[0]}, {regs[1]}')
        else:
            A(f'v_max3_u32 {tmp}, {regs[0]}, {regs[1]}, {regs[2]}')
            rest = regs[3:]
            while len(rest) >= 2:
                A(f'v_max3_u32 {tmp}, {tmp}, {rest[0]}, {rest[1]}')
                rest = rest[2:]
            if rest:
                A(f'v_max_u32 {tmp}, {tmp}, {rest[0]}')
        A(f'v_cmp_eq_u32 vcc, -1, {tmp}')

    def retry_loop(name, loads, check):
        A(f'{name}_chk:')
        check()
        A(f's_cbranch_vccz {name}_ok')
        A(f's_cmp_eq_u32 {sSpin}, 0')
        A(f's_cbranch_scc1 {name}_ok')
        A(f's_sub_u32 {sSpin}, {sSpin}, 1')
        for l in loads:
            A(l)
        A('s_waitcnt vmcnt(0)')
        A(f's_branch {name}_chk')
        A(f'{name}_ok:')

    def ln_scalars(vsum, vsq, vm, vrs, t0):
        A(f'v_mul_f32 {vm}, 0x3acccccd, {vsum}')
        A(f'v_mul_f32 {t0}, 0x3acccccd, {vsq}')
        A(f'v_fma_f32 {t0}, -{vm}, {vm}, {t0}')
        A(f'v_max_f32 {t0}, 0, {t0}')
        rbf(t0, t0)
        A(f'v_add_f32 {t0}, 0x3727c5ac, {t0}')
        rbf(t0, t0)
        A(f'v_sqrt_f32 {t0}, {t0}')
        rbf(vm, vm)
        rbf(t0, t0)
        A(f'v_rcp_f32 {vrs}, {t0}')

    A(f'{KN}:')
    if P['stamps']:
        for k in range(1, 15):
            A(f's_mov_b32 s{70 + 2 * k}, 0')
    stamp(0)
    A('s_cmp_ge_u32 s2, 256')
    A('s_cbranch_scc1 L_exit')
    A('s_load_dwordx2 s[20:21], s[0:1], 0')
    A('s_load_dwordx2 s[32:33], s[0:1], 24')
    A('s_load_dwordx2 s[24:25], s[0:1], 8')
    A('s_load_dwordx2 s[36:37], s[0:1], 96')
    A('s_load_dwordx2 s[28:29], s[0:1], 16')
    A('s_load_dwordx2 s[40:41], s[0:1], 88')
    A('s_load_dwordx2 s[52:53], s[0:1], 80')
    A(f'v_lshrrev_b32 v44, 6, v0')
    A(f'v_and_b32 {vL}, 63, v0')
    A(f'v_readfirstlane_b32 {sW}, v44')
    A(f's_lshr_b32 {sT}, s2, 3')
    A(f's_and_b32 {sXX}, s2, 7')
    if P['xcdmap']:
        A(f's_and_b32 {sH}, {sT}, 3')
        A(f's_lshl2_add_u32 {sH}, {sXX}, {sH}')
        A(f's_lshr_b32 {sI}, s2, 5')
    else:
        A(f's_mov_b32 {sH}, {sT}')
        A(f's_mov_b32 {sI}, {sXX}')
    A('s_movk_i32 s22, 1280\ns_mov_b32 s23, 0x20000')
    A('s_mov_b32 s26, 402653184\ns_mov_b32 s27, 0x20000')
    A('s_mov_b32 s30, 402653184\ns_mov_b32 s31, 0x20000')
    A('s_mov_b32 s34, 7864320\ns_mov_b32 s35, 0x20000')
    A(f's_mov_b32 s38, {(64 << 20) if P["stamps"] else WS_USED}\ns_mov_b32 s39, 0x20000')
    A('s_movk_i32 s42, 256\ns_mov_b32 s43, 0x20000')
    A('s_movk_i32 s54, 1280\ns_mov_b32 s55, 0x20000')
    A(f's_mov_b32 {sSpin}, {SPIN}')
    A(f'v_lshrrev_b32 v44, 3, {vL}')
    A(f'v_and_b32 v45, 7, {vL}')
    A(f'v_lshlrev_b32 v46, 4, v45')
    A(f's_movk_i32 {sA}, 384')
    A(f'v_mad_u32_u24 {vVo}, v44, {sA}, v46')
    A(f's_movk_i32 {sB_}, 12288')
    A(f'v_mad_u32_u24 {vQo}, v44, {sB_}, v46')
    A(f'v_bfe_u32 v47, {vL}, 1, 3')
    A(f'v_lshrrev_b32 v48, 4, {vL}')
    A(f'v_and_b32 v49, 1, {vL}')
    A(f'v_lshl_add_u32 v48, v48, 1, v49')
    A(f'v_lshlrev_b32 v63, 4, v48')
    A(f'v_mad_u32_u24 {vKo}, v47, {sA}, v63')
    A(f's_mul_i32 {sKV}, {sH}, 12582912')
    A(f's_mul_i32 {sA}, {sI}, 196608')
    A(f's_add_u32 {sKV}, {sKV}, {sA}')
    A(f's_mul_i32 {sA}, {sW}, 24576')
    A(f's_add_u32 {sKV}, {sKV}, {sA}')
    A(f's_add_u32 {sKV}, {sKV}, {28672 * 384}')
    A(f's_lshl3_add_u32 {sRec}, {sH}, {sI}')
    A(f's_mul_i32 {sRec}, {sRec}, {REC}')
    A(f's_mul_i32 {sA}, {sI}, 80')
    A(f's_lshl3_add_u32 {sB_}, {sW}, {sA}')
    A(f's_mul_i32 {sC}, {sW}, 43')
    A(f's_lshr_b32 {sC}, {sC}, 7')
    A(f's_mul_i32 {sD_}, {sC}, 3')
    A(f's_sub_u32 {sD_}, {sW}, {sD_}')
    A(f's_lshl3_add_u32 {sA}, {sC}, {sA}')
    A(f's_add_u32 {sA}, {sA}, 64')
    A(f'v_add_lshl_u32 v50, v44, {sB_}, 1')
    A(f'v_add_lshl_u32 v51, v44, {sA}, 1')
    A(f'v_lshlrev_b32 v52, 4, {vL}')
    A(f'v_lshlrev_b32 v53, 2, {vL}')
    A(f's_mul_i32 {sM}, {sH}, 384')
    A(f's_mul_i32 {sB_}, {sB_}, 12288')
    A(f's_add_u32 {sB_}, {sB_}, {sM}')
    A(f's_mul_i32 {sA}, {sA}, 12288')
    A(f's_add_u32 {sA}, {sA}, {sM}')
    A(f's_lshl_b32 {sM}, {sD_}, 7')
    A(f's_add_u32 {sA}, {sA}, {sM}')
    A(f's_cmp_lt_u32 {sW}, 6')
    A(f's_cselect_b32 {sA}, {sA}, 0x80000000')
    A(f'v_add_u32 v54, {sA}, {vQo}')
    A(f's_cmp_ge_u32 {sT}, 20\ns_cselect_b32 {sRole}, 1, 0')
    A(f's_cmp_ge_u32 {sT}, 26\ns_cselect_b32 {sRole}, 2, {sRole}')
    A(f's_cmp_ge_u32 {sT}, 31\ns_cselect_b32 {sRole}, 3, {sRole}')
    A(f's_mul_i32 {sIdx}, {sXX}, 6\ns_add_u32 {sIdx}, {sIdx}, {sT}\ns_sub_u32 {sIdx}, {sIdx}, 20')
    A(f's_mul_i32 {sM}, {sXX}, 5\ns_add_u32 {sM}, {sM}, {sT}\ns_sub_u32 {sM}, {sM}, 26')
    A(f's_cmp_eq_u32 {sRole}, 2\ns_cselect_b32 {sIdx}, {sM}, {sIdx}')
    A(f's_cmp_eq_u32 {sRole}, 0\ns_cselect_b32 {sIdx}, {sT}, {sIdx}')
    A('s_waitcnt lgkmcnt(0)')
    stamp(1)
    A('s_load_dwordx4 s[56:59], s[0:1], 48')
    A('s_load_dwordx4 s[60:63], s[0:1], 64')
    A('s_load_dwordx2 s[64:65], s[0:1], 32')

    XA, XB, XE0, XE1 = 8, 12, 13, 14
    load(f'buffer_load_dwordx4 {vr(XA)}, v52, {X}, 0 offen', 'xa')
    load(f'buffer_load_dword v{XB}, v53, {X}, 0 offen offset:1024', 'xb')
    load(f'buffer_load_ushort v{XE0}, v50, {X}, 0 offen', 'xe0')
    load(f'buffer_load_ushort v{XE1}, v51, {X}, 0 offen', 'xe1')
    for s in range(3):
        load(f'buffer_load_dwordx4 {vr(VR + 4 * s)}, {vQo}, {WQ}, {sB_} offen offset:{128 * s} {NT}', f'wq{s}')
    load(f'buffer_load_dwordx4 {vr(VR + 12)}, v54, {WQ}, 0 offen {NT}', 'wq3')

    stream = [('K', g, s) for g in range(8) for s in range(3)] + [('V', g, s) for g in range(8) for s in range(3)]
    pos = [0]

    def issue_next():
        if pos[0] >= len(stream):
            return False
        kind, g, s = stream[pos[0]]
        pos[0] += 1
        if kind == 'W':
            if g == 0:
                A(f's_mov_b32 {sOff}, 0')
            else:
                A(f's_add_u32 {sOff}, {sOff}, {sStep}')
            A(f's_add_u32 m0, {sD_}, {1024 * g}')
            load(f'buffer_load_dwordx4 {vWo}, {WTS}, {sOff} offen {WNT} lds', (kind, g, s))
            return True
        if s == 0:
            A(f's_add_u32 {sOff}, {sKV}, {3072 * g}')
        base, vo, srd = (KR, vKo, K) if kind == 'K' else (VR, vVo, V)
        load(f'buffer_load_dwordx4 {vr(base + 12 * g + 4 * s)}, {vo}, {srd}, {sOff} offen offset:{128 * s} {NT}', (kind, g, s))
        return True

    done = [-1]

    def fill(extra=0):
        while pos[0] < len(stream) and pos[0] - (done[0] + 1) < D + extra:
            issue_next()

    def step():
        done[0] += 1
        wait(stream[done[0]])
        fill()

    def step_until(idx):
        while done[0] < idx:
            step()

    for _ in range(P['init_k']):
        issue_next()

    A(f's_cmp_lg_u32 {sW}, 7')
    A('s_cbranch_scc1 L_noclear')
    A('v_mov_b32 v56, -1\nv_mov_b32 v57, -1\nv_mov_b32 v58, -1\nv_mov_b32 v59, -1')
    A(f'v_add_u32 v55, {sRec}, v52')
    A(f'buffer_store_dwordx4 v[56:59], v55, {WS}, 0 offen sc1')
    A(f's_mul_i32 {sA}, {sXX}, 2560\ns_lshl_b32 {sM}, {sIdx}, 7\ns_add_u32 {sA}, {sA}, {sM}\ns_add_u32 {sA}, {sA}, {YP_OFF - 256}')
    A(f's_lshl_b32 {sM}, {sIdx}, 6\ns_add_u32 {sM}, {sM}, {H1_OFF - 256}')
    A(f's_cmp_eq_u32 {sRole}, 0\ns_cselect_b32 {sA}, {sA}, {sM}')
    A(f's_cselect_b32 {sM}, 24, 20')
    A(f's_cmp_ge_u32 {sRole}, 2\ns_cselect_b32 {sM}, 16, {sM}')
    A(f'v_add_u32 v55, 1024, v55')
    A(f'v_add_u32 v47, {sA}, v52')
    A(f'v_cmp_gt_u32 vcc, 16, {vL}')
    A(f'v_cndmask_b32 v55, v47, v55, vcc')
    A(f'v_cmp_gt_u32 vcc, {sM}, {vL}')
    A('s_and_saveexec_b64 s[8:9], vcc')
    A(f'buffer_store_dwordx4 v[56:59], v55, {WS}, 0 offen sc1')
    A('s_mov_b64 exec, -1')
    A('L_noclear:')

    A(f'v_lshlrev_b32 v47, 4, v49')
    A(f'v_mov_b32 v48, 0xffff')
    A(f'v_lshlrev_b32 v47, v47, v48')
    A(f'v_lshrrev_b32 v48, 1, v45')
    for r in range(4):
        A(f'v_cmp_eq_u32 vcc, {r}, v48')
        A(f'v_cndmask_b32 v{MK + r}, 0, v47, vcc')
    A(f'v_lshrrev_b32 v47, 5, {vL}')
    A(f's_lshl_b32 {sA}, {sW}, 1')
    A(f'v_add_u32 v47, {sA}, v47')
    A(f'v_mul_u32_u24 v47, {RSTR}, v47')
    A(f'v_bfe_u32 v48, {vL}, 4, 1')
    A(f'v_lshl_add_u32 v48, v45, 1, v48')
    A(f'v_lshl_add_u32 {vRedW}, v48, 4, v47')
    A(f'v_add_u32 {vRedW}, {REDB}, {vRedW}')
    A(f's_lshl_b32 {sC}, {sC}, 1\ns_add_u32 {sC}, {sC}, 16\ns_sub_u32 {sC}, {sC}, {sA}\ns_mul_i32 {sC}, {sC}, {RSTR}')
    A(f's_lshl_b32 {sD_}, {sD_}, 8\ns_add_u32 {sC}, {sC}, {sD_}')
    A(f'v_add_u32 v55, {sC}, {vRedW}')
    A(f'v_and_b32 v47, 3, {vL}')
    A(f'v_mul_u32_u24 v47, {RSTR}, v47')
    A(f'v_lshrrev_b32 v48, 2, {vL}')
    A(f'v_lshl_add_u32 v47, v48, 4, v47')
    A(f's_lshl_b32 {sA}, {sW}, 8\ns_add_u32 {sA}, {sA}, {REDB - 1024}')
    A(f'v_add_u32 {vRedR}, {sA}, v47')
    A(f's_mov_b32 {sLog2e}, 0x3fb8aa3b')

    wait('xb')
    A(f's_mov_b32 {sA}, 0x3f803f80')
    A(f'v_dot2_f32_bf16 v47, v{XA}, {sA}, 0')
    A(f'v_dot2_f32_bf16 v48, v{XA}, v{XA}, 0')
    for r in range(1, 5):
        A(f'v_dot2_f32_bf16 v47, v{XA + r}, {sA}, v47')
        A(f'v_dot2_f32_bf16 v48, v{XA + r}, v{XA + r}, v48')
    reduce64('v_add_f32', ['v47', 'v48'])
    A(f'v_readlane_b32 {sA}, v47, 63')
    A(f'v_readlane_b32 {sB_}, v48, 63')
    A(f'v_mov_b32 v47, {sA}')
    A(f'v_mov_b32 v48, {sB_}')
    ln_scalars('v47', 'v48', 'v50', 'v51', 'v52')
    wait('xe1')
    for n, xe in enumerate((XE0, XE1)):
        A(f'v_lshlrev_b32 v{xe}, 16, v{xe}')
        A(f'v_sub_f32 v{xe}, v{xe}, v50')
        rbf(f'v{xe}', f'v{xe}')
        A(f'v_mul_f32 v{xe}, v{xe}, v51')
        A(f'v_cvt_pk_bf16_f32 v{xe}, v{xe}, v{xe}')
        for r in range(4):
            A(f'v_and_b32 v{S + 4 * n + r}, v{xe}, v{MK + r}')
    for s in range(4):
        wait(f'wq{s}')
        if pos[0] < D + P['boost']:
            issue_next()
        A(f'v_mfma_f32_16x16x32_bf16 {vr(ACC + 4 * s)}, {vr(S + (4 if s == 3 else 0))}, {vr(VR + 4 * s)}, 0')
    stamp(2)
    fill(P['boost'])
    A(f's_cmp_lg_u32 {sW}, 7')
    A('s_cbranch_scc1 L_noflag')
    A('s_waitcnt vmcnt(0)')
    stamp(13)
    A('v_mov_b32 v47, 1\nv_mov_b32 v48, s2')
    A('s_mov_b64 exec, 1')
    A(f'buffer_store_byte v47, v48, {DBG}, 0 offen sc1')
    A('L_noflag:')
    A('s_mov_b32 exec_lo, 0x00ff00ff\ns_mov_b32 exec_hi, 0xff00ff00')
    for s in range(3):
        A(f'ds_write_b128 {vRedW}, {vr(ACC + 4 * s)} offset:{RED + 256 * s}')
    A(f'ds_write_b128 v55, {vr(ACC + 12)} offset:{RED}')
    A('s_mov_b64 exec, -1')
    A('s_waitcnt lgkmcnt(0)')
    A('s_barrier')
    A(f's_sub_u32 {sA}, {sW}, 4')
    A(f's_cmp_gt_u32 {sA}, 2')
    A('s_cbranch_scc1 L_noqpub')
    for n in range(5):
        A(f'ds_read_b128 {vr(S + 4 * n)}, {vRedR} offset:{RED + 4 * n * RSTR}')
    A(f's_lshl_b32 {sA}, {sA}, 8\ns_add_u32 {sA}, {sA}, {sRec}')
    A(f'v_lshlrev_b32 v47, 2, {vL}')
    A(f'v_add_u32 v47, {sA}, v47')
    A('s_waitcnt lgkmcnt(0)')
    for n in range(1, 5):
        for h in (0, 2):
            A(f'v_pk_add_f32 {vr(S + h, 2)}, {vr(S + h, 2)}, {vr(S + 4 * n + h, 2)}')
    for m in ('quad_perm:[1,0,3,2]', 'quad_perm:[2,3,0,1]'):
        for r in range(4):
            A(f'v_add_f32_dpp v{S + r}, v{S + r}, v{S + r} {m} {DPPF}')
    A('s_mov_b32 exec_lo, 0x11111111\ns_mov_b32 exec_hi, 0x11111111')
    A(f'buffer_store_dwordx4 {vr(S)}, v47, {WS}, 0 offen offset:{QP_O} sc1')
    A('s_mov_b64 exec, -1')
    A('L_noqpub:')
    stamp(3)

    A(f's_mov_b32 s46, 1966080\ns_mov_b32 {sStep}, 40960\ns_movk_i32 s50, 1280')
    A(f's_cmp_eq_u32 {sRole}, 0')
    A('s_cselect_b32 s44, s64, s60\ns_cselect_b32 s45, s65, s61')
    A('s_cselect_b32 s46, 7864320, s46')
    A(f's_cselect_b32 {sStep}, 20480, {sStep}')
    A(f's_cmp_eq_u32 {sRole}, 1')
    A('s_cselect_b32 s44, s56, s44\ns_cselect_b32 s45, s57, s45')
    A(f's_cselect_b32 {sStep}, 49152, {sStep}')
    A('s_cselect_b32 s48, s58, s62\ns_cselect_b32 s49, s59, s63')
    A('s_cselect_b32 s50, 3072, s50')
    A(f's_mov_b32 {sB_}, s50')
    A(f's_cselect_b32 {sA}, 10, 12')
    A('s_mov_b32 s47, 0x20000\ns_mov_b32 s51, 0x20000')
    A(f's_cmp_eq_u32 {sRole}, 3')
    A('s_cselect_b32 s46, 0, s46')
    A(f's_mul_i32 {sA}, {sA}, {sStep}')
    A(f's_and_b32 {sD_}, {sW}, 3')
    A(f's_mul_i32 {sA}, {sA}, {sD_}')
    A(f's_mul_i32 {sC}, {sXX}, {768 * 1280}')
    A(f's_cmp_eq_u32 {sRole}, 0\ns_cselect_b32 {sC}, {sC}, 0')
    A(f's_add_u32 {sA}, {sA}, {sC}')
    A(f's_cmp_eq_u32 {sRole}, 2\ns_cselect_b32 {sC}, 5, 6\ns_cselect_b32 {sM}, 1, 2')
    A(f's_lshl_b32 {sC}, {sIdx}, {sC}')
    A(f's_add_u32 {sA}, {sA}, {sC}')
    A(f'v_lshrrev_b32 v47, {sM}, {vL}')
    A(f'v_mul_lo_u32 v48, v47, {sB_}')
    A(f'v_lshlrev_b32 v47, {sM}, v47')
    A(f'v_sub_u32 v47, {vL}, v47')
    A(f'v_lshl_add_u32 v48, v47, 4, v48')
    A(f'v_add_u32 {vWo}, {sA}, v48')
    A(f's_mul_i32 {sD_}, {sD_}, 12288')

    step_until(P['flag_at'] - D)
    fl = f'buffer_load_dword v44, v53, {DBG}, 0 offen sc1'
    load(fl, 'flag')
    mark = pos[0] - 1
    A(f's_lshl_b32 {sA}, {sH}, 3')
    A(f'v_add_u32 v47, {sA}, v45')
    A(f'v_mul_u32_u24 v47, {REC}, v47')
    A(f'v_lshrrev_b32 v48, 3, {vL}')
    A(f'v_lshl_add_u32 v47, v48, 4, v47')
    A(f's_mul_i32 {sA}, {sW}, 96')
    A(f'v_add_u32 v47, {sA}, v47')
    A(f's_lshr_b32 {sA}, {sA}, 1')
    A(f'v_lshl_add_u32 v46, v48, 3, {sA}')
    step_until(mark)
    wait('flag')
    retry_loop('L_flag', [fl], lambda: A(f'v_cmp_ne_u32 vcc, 0x01010101, v44'))
    stamp(4)
    A('s_mov_b32 exec_hi, 0xffff')
    ql = f'buffer_load_dwordx4 {vr(S)}, v47, {WS}, 0 offen offset:{QP_O} sc1'
    load(ql, 'qg')
    A('s_mov_b32 exec_hi, -1')
    mark = pos[0] - 1
    step_until(mark)
    fill(P['boost'])
    wait('qg')
    A('s_mov_b32 exec_hi, 0xffff')
    retry_loop('L_qg', [ql], lambda: sentinel_check([f'v{S + r}' for r in range(4)], 'v44'))
    for m in ('quad_perm:[1,0,3,2]', 'quad_perm:[2,3,0,1]', 'row_half_mirror'):
        for r in range(4):
            A(f'v_add_f32_dpp v{S + r}, v{S + r}, v{S + r} {m} {DPPF}')
    A(f'v_cvt_pk_bf16_f32 v{S}, v{S}, v{S + 1}')
    A(f'v_cvt_pk_bf16_f32 v{S + 1}, v{S + 2}, v{S + 3}')
    A(f'ds_write_b64 v46, {vr(S, 2)} offset:{QB}')
    A('s_mov_b32 exec_hi, -1')
    A('s_waitcnt lgkmcnt(0)')
    A('s_barrier')
    for s in range(3):
        A(f'ds_read_b128 {vr(QOP + 4 * s)}, v63 offset:{QB + 128 * s}')
    A('s_mov_b32 s8, 0xff00ff00\ns_mov_b32 s9, 0xff00ff00')
    A(f's_mov_b32 {sA}, 0xaaaaaaaa\ns_mov_b32 {sB_}, 0xaaaaaaaa')
    A('s_waitcnt lgkmcnt(0)')
    stamp(5)

    for g in range(8):
        step_until(3 * g + 2)
        if g == 7:
            fill(P['boost'])
        for s in range(3):
            A(f'v_mfma_f32_16x16x32_bf16 {vr(T)}, {vr(KR + 12 * g + 4 * s)}, {vr(QOP + 4 * s)}, {vr(T) if s else 0}')
        A(f'v_cndmask_b32 v{T}, v{T}, v{T + 2}, {sMk}')
        A(f'v_cndmask_b32 v{T + 1}, v{T + 1}, v{T + 3}, {sMk}')
        A(f'v_cndmask_b32 v{T}, v{T}, v{T + 1}, s[16:17]')
        A(f'v_add_f32_dpp v{T}, v{T}, v{T} quad_perm:[1,0,3,2] {DPPF}')
        rbf(f'v{T}', f'v{T}')
        A(f'v_mul_f32 v{T}, 0x3d93cd3a, v{T}')
        rbf(f'v{S + g}', f'v{T}')
    stamp(6)
    A(f'v_max3_f32 v44, v{S}, v{S + 1}, v{S + 2}')
    A(f'v_max3_f32 v44, v44, v{S + 3}, v{S + 4}')
    A(f'v_max3_f32 v44, v44, v{S + 5}, v{S + 6}')
    A(f'v_max_f32 v44, v44, v{S + 7}')
    A(f'v_mul_f32 v44, {sLog2e}, v44')
    for g in range(8):
        A(f'v_fma_f32 v{S + g}, v{S + g}, {sLog2e}, -v44')
    for g in range(8):
        A(f'v_exp_f32 v{S + g}, v{S + g}')
    A(f'v_and_b32 v46, 0x38, {vL}')
    A(f's_lshl_b32 {sA}, {sW}, 6')
    A(f'v_add_u32 v46, {sA}, v46')
    A(f'v_add_f32 v45, v{S}, v{S + 1}')
    for g in range(2, 8):
        A(f'v_add_f32 v45, v45, v{S + g}')
    A(f'ds_write_b64 v46, v[44:45] offset:{MLB}')
    A(f'v_lshlrev_b32 v46, 3, {vL}')
    A('s_waitcnt lgkmcnt(0)')
    A('s_barrier')
    A(f'ds_read_b64 v[48:49], v46 offset:{MLB}')
    A('s_waitcnt lgkmcnt(0)')
    A('v_mov_b32 v50, v48')
    reduce64('v_max_f32', ['v50'])
    A(f'v_readlane_b32 {sM}, v50, 63')
    A(f'v_subrev_f32 v44, {sM}, v44')
    A('v_exp_f32 v44, v44')
    A(f's_cmp_lg_u32 {sW}, 7')
    A('s_cbranch_scc1 L_nomlpub')
    A(f'v_subrev_f32 v48, {sM}, v48')
    A('v_exp_f32 v48, v48')
    A('v_mul_f32 v51, v48, v49')
    reduce64('v_add_f32', ['v51'])
    A(f'v_mov_b32 v46, {sRec}')
    A('s_mov_b32 exec_lo, 0\ns_mov_b32 exec_hi, 0x80000000')
    A(f'buffer_store_dwordx2 v[50:51], v46, {WS}, 0 offen offset:{ML_O} sc1')
    A('s_mov_b64 exec, -1')
    A('L_nomlpub:')
    for g in range(8):
        A(f'v_mul_f32 v{S + g}, v{S + g}, v44')
        A(f'v_cvt_pk_bf16_f32 v{S + g}, v{S + g}, v{S + g}')
        for r in range(4):
            A(f'v_and_b32 v{KR + 4 * g + r}, v{S + g}, v{MK + r}')
    stamp(7)

    def pv(idx):
        step_until(idx)
        _, g, s = stream[idx]
        A(f'v_mfma_f32_16x16x32_bf16 {vr(ACC + 4 * s)}, {vr(KR + 4 * g)}, {vr(VR + 12 * g + 4 * s)}, {vr(ACC + 4 * s) if g else 0}')

    idx = 24
    while pos[0] < 48:
        pv(idx)
        idx += 1

    def finish_pv():
        A('s_mov_b32 exec_lo, 0x00ff00ff\ns_mov_b32 exec_hi, 0xff00ff00')
        for s in range(3):
            A(f'ds_write_b128 {vRedW}, {vr(ACC + 4 * s)} offset:{RED + 256 * s}')
        A('s_mov_b64 exec, -1')

    A(f's_cmp_lt_u32 {sW}, 4')
    A('s_cbranch_scc1 L_lowwaves')
    save = (list(issued), pos[0], done[0])
    for k in range(idx, 48):
        pv(k)
    stamp(8)
    finish_pv()
    A(f's_sub_u32 {sA}, {sW}, 4\ns_lshl_b32 {sA}, {sA}, 7\ns_add_u32 {sA}, {sA}, {sRec}')
    A(f'v_lshlrev_b32 v47, 1, {vL}')
    A(f'v_add_u32 v47, {sA}, v47')
    A('s_waitcnt lgkmcnt(0)')
    A('s_barrier')
    A(f's_cmp_eq_u32 {sW}, 7')
    A('s_cbranch_scc1 L_done')
    for n in range(4):
        A(f'ds_read_b128 {vr(S + 4 * n)}, {vRedR} offset:{RED + 4 * n * RSTR}')
    A('s_waitcnt lgkmcnt(0)')
    for h in (0, 2):
        A(f'v_pk_add_f32 {vr(S + h, 2)}, {vr(S + h, 2)}, {vr(S + 4 + h, 2)}')
        A(f'v_pk_add_f32 {vr(S + 8 + h, 2)}, {vr(S + 8 + h, 2)}, {vr(S + 12 + h, 2)}')
    for h in (0, 2):
        A(f'v_pk_add_f32 {vr(S + h, 2)}, {vr(S + h, 2)}, {vr(S + 8 + h, 2)}')
    for m in ('quad_perm:[1,0,3,2]', 'quad_perm:[2,3,0,1]'):
        for r in range(4):
            A(f'v_add_f32_dpp v{S + r}, v{S + r}, v{S + r} {m} {DPPF}')
    A(f'v_cvt_pk_bf16_f32 v{S}, v{S}, v{S + 1}')
    A(f'v_cvt_pk_bf16_f32 v{S + 1}, v{S + 2}, v{S + 3}')
    A(f'v_mov_b32_dpp v{S + 2}, v{S} row_shl:4 {DPPF}')
    A(f'v_mov_b32_dpp v{S + 3}, v{S + 1} row_shl:4 {DPPF}')
    A('s_mov_b32 exec_lo, 0x01010101\ns_mov_b32 exec_hi, 0x01010101')
    A(f'buffer_store_dwordx4 {vr(S)}, v47, {WS}, 0 offen offset:{OP_O} sc1')
    stamp(9)
    A('L_done:')
    end()

    A('L_lowwaves:')
    issued[:], pos[0], done[0] = save
    stream.extend(('W', n, 0) for n in range(10))
    for k in range(idx, 48):
        pv(k)
    stamp(8)
    finish_pv()
    A('s_waitcnt lgkmcnt(0)')
    A('s_barrier')
    while issue_next():
        pass
    A(f's_cmp_eq_u32 {sRole}, 1')
    A('s_cbranch_scc1 L_skipw')
    stream.extend(('W', n, 0) for n in (10, 11))
    while issue_next():
        pass
    A('L_skipw:')
    stamp(14)
    A(f's_cmp_eq_u32 {sRole}, 1\ns_cbranch_scc1 L_ffn1')
    A(f's_cmp_eq_u32 {sRole}, 2\ns_cbranch_scc1 L_ffn2')
    A(f's_cmp_eq_u32 {sRole}, 3\ns_cbranch_scc1 L_done')

    BW = 96
    GA = 144
    AC = 160

    def tr_addr(rowbytes_log2):
        A(f'v_lshrrev_b32 v46, 4, {vL}')
        A(f'v_bfe_u32 v47, {vL}, 2, 2')
        A(f'v_lshl_add_u32 v46, v46, 3, v47')
        A(f'v_lshlrev_b32 v46, {rowbytes_log2}, v46')
        A(f'v_and_b32 v47, 3, {vL}')
        A(f'v_lshl_add_u32 v46, v47, 3, v46')
        A(f'v_add_u32 v46, {sD_}, v46')

    A(f's_lshl2_add_u32 {sA}, {sXX}, {sW}')
    A(f's_mul_i32 {sA}, {sA}, {8 * REC}')
    A(f'v_bfe_u32 v47, {vL}, 4, 1')
    A(f'v_and_b32 v48, 3, {vL}')
    A(f'v_lshl_add_u32 v47, v47, 2, v48')
    A(f'v_xor_b32 v48, 4, v47')
    A(f'v_mul_u32_u24 v52, {REC}, v47')
    A(f'v_mul_u32_u24 v53, {REC}, v48')
    ml = [f'buffer_load_dwordx2 v[56:57], v52, {WS}, {sA} offen offset:{ML_O} sc1',
          f'buffer_load_dwordx2 v[58:59], v53, {WS}, {sA} offen offset:{ML_O} sc1']
    for l in ml:
        A(l)
    A(f'v_and_b32 v47, 7, {vL}')
    A(f'v_mul_u32_u24 v54, {REC}, v47')
    A(f'v_bfe_u32 v47, {vL}, 3, 1')
    A(f'v_lshl_add_u32 v54, v47, 6, v54')
    A(f'v_lshrrev_b32 v47, 4, {vL}')
    A(f'v_lshl_add_u32 v54, v47, 4, v54')
    ol = [f'buffer_load_dwordx4 {vr(GA + 4 * n)}, v54, {WS}, {sA} offen offset:{OP_O + 128 * n} sc1' for n in range(3)]
    for l in ol:
        A(l)
    tr_addr(6)
    A('s_waitcnt vmcnt(5)')
    stamp(10)
    for kk in range(6):
        for t in range(2):
            for half in range(2):
                A(f'ds_read_b64_tr_b16 {vr(BW + 8 * kk + 4 * t + 2 * half, 2)}, v46 offset:{WT + 2048 * kk + 256 * half + 32 * t}')
    A(f'v_lshrrev_b32 v47, 5, {vL}')
    A(f'v_and_b32 v48, 15, {vL}')
    A(f'v_lshl_add_u32 v47, v47, 4, v48')
    A(f'v_mul_u32_u24 v47, 48, v47')
    A(f'v_bfe_u32 v48, {vL}, 4, 1')
    A(f'v_lshl_add_u32 v47, v48, 2, v47')
    A(f's_lshl_b32 {sB_}, {sW}, 3')
    A(f'v_add_u32 v60, {sB_}, v47')
    A(f'v_lshrrev_b32 v47, 1, {vL}')
    A(f'v_mul_u32_u24 v61, 48, v47')
    A(f'v_and_b32 v48, 1, {vL}')
    A(f'v_lshl_add_u32 v61, v48, 4, v61')
    A(f's_mul_i32 {sB_}, {sXX}, 2560\ns_lshl_b32 {sC}, {sIdx}, 7\ns_add_u32 {sB_}, {sB_}, {sC}\ns_add_u32 {sB_}, {sB_}, {YP_OFF}')
    A(f'v_lshl_add_u32 v62, v47, 2, {sB_}')
    A('s_waitcnt vmcnt(3)')
    retry_loop('L_ml', ml, lambda: sentinel_check(['v56', 'v57', 'v58', 'v59'], 'v44'))
    A('v_max_f32 v44, v56, v58')
    A(f'v_max_f32_dpp v44, v44, v44 quad_perm:[1,0,3,2] {DPPF}')
    A(f'v_max_f32_dpp v44, v44, v44 quad_perm:[2,3,0,1] {DPPF}')
    A('v_sub_f32 v56, v56, v44\nv_sub_f32 v58, v58, v44')
    A('v_exp_f32 v56, v56\nv_exp_f32 v58, v58')
    A('v_mul_f32 v44, v56, v57\nv_fmac_f32 v44, v58, v59')
    A(f'v_add_f32_dpp v44, v44, v44 quad_perm:[1,0,3,2] {DPPF}')
    A(f'v_add_f32_dpp v44, v44, v44 quad_perm:[2,3,0,1] {DPPF}')
    A('v_rcp_f32 v44, v44')
    A('v_mul_f32 v44, v56, v44')
    for r in range(4):
        A(f'v_mov_b32_dpp v{56 + r}, v44 quad_perm:[{r},{r},{r},{r}] {DPPF}')
    A('s_mov_b32 s8, 0\ns_mov_b32 s9, -1')
    A('s_waitcnt vmcnt(0) lgkmcnt(0)')
    retry_loop('L_op', ol, lambda: sentinel_check([f'v{GA + r}' for r in range(12)], 'v44'))
    stamp(11)
    for kk in range(6):
        for t in range(2):
            a = AC + 8 * t + 4 * (kk & 1)
            A(f'v_mfma_f32_16x16x32_bf16 {vr(a)}, {vr(GA + 4 * (kk >> 1))}, {vr(BW + 8 * kk + 4 * t)}, {vr(a) if kk >= 2 else 0}')
    for t in range(2):
        for r in range(4):
            A(f'v_cndmask_b32 v{AC + 8 * t + r}, v{AC + 8 * t + r}, v{AC + 8 * t + 4 + r}, {sMk}')
        A(f'v_mul_f32 v{44 + t}, v56, v{AC + 8 * t}')
        for r in range(1, 4):
            A(f'v_fmac_f32 v{44 + t}, v{56 + r}, v{AC + 8 * t + r}')
    A('v_permlane32_swap_b32 v44, v45')
    A('v_add_f32 v44, v44, v45')
    A(f'ds_write_b32 v60, v44 offset:{ZB}')
    A('s_waitcnt lgkmcnt(0)')
    A('s_barrier')
    A(f's_cmp_lg_u32 {sW}, 0\ns_cbranch_scc1 L_done')
    A(f'ds_read_b128 v[44:47], v61 offset:{ZB}')
    A('s_waitcnt lgkmcnt(0)')
    A('v_pk_add_f32 v[44:45], v[44:45], v[46:47]')
    A('v_add_f32 v44, v44, v45')
    A(f'v_add_f32_dpp v44, v44, v44 quad_perm:[1,0,3,2] {DPPF}')
    A(f'v_mov_b32_dpp v45, v44 row_shl:2 {DPPF}')
    A(f'v_mov_b32_dpp v46, v44 row_shl:4 {DPPF}')
    A(f'v_mov_b32_dpp v47, v44 row_shl:6 {DPPF}')
    A('s_mov_b32 exec_lo, 0x01010101\ns_mov_b32 exec_hi, 0x01010101')
    A(f'buffer_store_dwordx4 v[44:47], v62, {WS}, 0 offen sc1')
    stamp(12)
    end()

    A('L_ffn1:')
    A(f's_mul_i32 {sA}, {sW}, 320')
    A(f'v_lshl_add_u32 v52, {vL}, 3, {sA}')
    A(f's_lshl_b32 {sB_}, {sIdx}, 6')
    A(f'v_and_b32 v47, 31, {vL}')
    A(f'v_lshl_add_u32 v53, v47, 1, {sB_}')
    A(f'buffer_load_dwordx2 v[56:57], v52, {X}, 0 offen')
    A(f'buffer_load_ushort v58, v53, {BI}, 0 offen')
    tr_addr(6)
    A(f'v_lshlrev_b32 v54, 1, v52')
    A(f'v_add_u32 v54, {YP_OFF}, v54')
    A(f'v_and_b32 v47, 31, {vL}')
    A(f'v_lshlrev_b32 v61, 4, v47')
    A(f's_lshl_b32 {sC}, {sW}, 2')
    A(f'v_add_u32 v60, {sC}, v61')
    A(f'v_lshrrev_b32 v47, 4, {vL}')
    A(f'v_lshl_add_u32 v55, v47, 4, {sA}')
    A(f's_lshl_b32 {sC}, {sW}, 3')
    A(f'v_mov_b32 v63, {sC}')
    A(f'v_add_u32 v62, {H1_OFF}, v53')
    for r in range(4):
        A(f'v_mov_b32 v{GA + r}, 0x3f803f80')
    A('s_waitcnt vmcnt(0)')
    stamp(10)
    for kk in range(5):
        for t in range(2):
            for half in range(2):
                A(f'ds_read_b64_tr_b16 {vr(BW + 8 * kk + 4 * t + 2 * half, 2)}, v46 offset:{WT + 2048 * kk + 256 * half + 32 * t}')
    A('v_lshlrev_b32 v8, 16, v56\nv_and_b32 v9, 0xffff0000, v56')
    A('v_lshlrev_b32 v10, 16, v57\nv_and_b32 v11, 0xffff0000, v57')
    A('v_lshlrev_b32 v58, 16, v58')
    A('s_mov_b32 s8, 0xffff0000\ns_mov_b32 s9, 0xffff0000')
    A('s_waitcnt lgkmcnt(0)')
    for kk in range(5):
        for t in range(2):
            a = ACC + 4 * t
            A(f'v_mfma_f32_16x16x32_bf16 {vr(a)}, {vr(GA)}, {vr(BW + 8 * kk + 4 * t)}, {vr(a) if kk else 0}')
    A(f'v_cndmask_b32 v44, v{ACC}, v{ACC + 4}, {sMk}')
    A(f'ds_write_b32 v60, v44 offset:{CSB}')
    A('s_waitcnt lgkmcnt(0)')
    A('s_barrier')
    A(f'ds_read_b128 v[44:47], v61 offset:{CSB}')
    yl = [f'buffer_load_dwordx4 {vr(AC + 4 * n)}, v54, {WS}, {"0" if n < 2 else "s" + str(15 + n // 2)} offen offset:{2560 * (n & 1)} sc1' for n in range(8)]
    A('s_movk_i32 s16, 5120\ns_movk_i32 s17, 10240\ns_movk_i32 s18, 15360')
    A('s_mov_b32 exec_hi, 0xff')
    for l in yl:
        A(l)
    A('s_waitcnt lgkmcnt(0)')
    A('v_pk_add_f32 v[44:45], v[44:45], v[46:47]')
    A('v_add_f32 v59, v44, v45')
    A('s_waitcnt vmcnt(0)')
    retry_loop('L_yp', yl, lambda: sentinel_check([f'v{AC + r}' for r in range(32)], 'v44'))
    stamp(11)
    for st in (4, 8, 16):
        for n in range(0, 32, 2 * st):
            for h in (0, 2):
                A(f'v_pk_add_f32 {vr(AC + n + h, 2)}, {vr(AC + n + h, 2)}, {vr(AC + n + st + h, 2)}')
    A(f'v_cvt_pk_bf16_f32 v44, v{AC}, v{AC + 1}')
    A(f'v_cvt_pk_bf16_f32 v45, v{AC + 2}, v{AC + 3}')
    A('v_lshlrev_b32 v48, 16, v44\nv_and_b32 v49, 0xffff0000, v44')
    A('v_lshlrev_b32 v50, 16, v45\nv_and_b32 v51, 0xffff0000, v45')
    A('v_pk_add_f32 v[48:49], v[48:49], v[8:9]')
    A('v_pk_add_f32 v[50:51], v[50:51], v[10:11]')
    A('v_cvt_pk_bf16_f32 v44, v48, v49')
    A('v_cvt_pk_bf16_f32 v45, v50, v51')
    A(f'ds_write_b64 v52, v[44:45] offset:{HB}')
    A('s_mov_b32 exec_hi, -1')
    A('v_mov_b32 v48, 0\nv_mov_b32 v49, 0')
    A('s_waitcnt lgkmcnt(0)')
    for kk in range(5):
        A(f'ds_read_b128 {vr(AC + 4 * kk)}, v55 offset:{HB + 64 * kk}')
    A('s_mov_b32 exec_hi, 0xff')
    A(f'v_dot2_f32_bf16 v48, v44, v{GA}, 0')
    A('v_dot2_f32_bf16 v49, v44, v44, 0')
    A(f'v_dot2_f32_bf16 v48, v45, v{GA}, v48')
    A('v_dot2_f32_bf16 v49, v45, v45, v49')
    A('s_mov_b32 exec_hi, -1')
    reduce64('v_add_f32', ['v48', 'v49'])
    A('s_waitcnt lgkmcnt(0)')
    for kk in range(5):
        for t in range(2):
            a = ACC + 4 * t
            A(f'v_mfma_f32_16x16x32_bf16 {vr(a)}, {vr(AC + 4 * kk)}, {vr(BW + 8 * kk + 4 * t)}, {vr(a) if kk else 0}')
    A('s_mov_b32 exec_lo, 0\ns_mov_b32 exec_hi, 0x80000000')
    A(f'ds_write_b64 v63, v[48:49] offset:{STB}')
    A('s_mov_b64 exec, -1')
    A(f'v_cndmask_b32 v44, v{ACC}, v{ACC + 4}, {sMk}')
    A(f'ds_write_b32 v60, v44 offset:{ZB}')
    A('s_waitcnt lgkmcnt(0)')
    A('s_barrier')
    A(f's_cmp_lg_u32 {sW}, 0\ns_cbranch_scc1 L_done')
    A(f'ds_read_b128 v[48:51], v63 offset:{STB}')
    A(f'ds_read_b128 v[52:55], v63 offset:{STB + 16}')
    A(f'ds_read_b128 v[44:47], v61 offset:{ZB}')
    A('s_waitcnt lgkmcnt(0)')
    A('v_pk_add_f32 v[48:49], v[48:49], v[50:51]')
    A('v_pk_add_f32 v[52:53], v[52:53], v[54:55]')
    A('v_pk_add_f32 v[44:45], v[44:45], v[46:47]')
    A('v_pk_add_f32 v[48:49], v[48:49], v[52:53]')
    A('v_add_f32 v44, v44, v45')
    ln_scalars('v48', 'v49', 'v50', 'v51', 'v52')
    A('v_fma_f32 v44, -v50, v59, v44')
    A('v_mul_f32 v44, v44, v51')
    rbf('v44', 'v44')
    A('v_add_f32 v44, v44, v58')
    rbf('v44', 'v44')
    A('v_max_f32 v44, 0, v44')
    A('v_mul_f32 v44, v44, v44')
    A(f'v_mov_b32_dpp v45, v44 quad_perm:[1,1,3,3] {DPPF}')
    A('v_cvt_pk_bf16_f32 v44, v44, v45')
    A(f'v_mov_b32_dpp v45, v44 row_shl:2 {DPPF}')
    A(f'v_mov_b32_dpp v46, v44 row_shl:4 {DPPF}')
    A(f'v_mov_b32_dpp v47, v44 row_shl:6 {DPPF}')
    A('s_mov_b32 exec_lo, 0x01010101\ns_mov_b32 exec_hi, 0')
    A(f'buffer_store_dwordx4 v[44:47], v62, {WS}, 0 offen sc1')
    stamp(12)
    end()

    A('L_ffn2:')
    A(f's_lshl_b32 {sB_}, {sIdx}, 5')
    A(f'v_lshrrev_b32 v47, 2, {vL}')
    A(f'v_lshl_add_u32 v62, v47, 1, {sB_}')
    A(f'buffer_load_ushort v56, v62, {X}, 0 offen')
    A(f'buffer_load_ushort v58, v62, {BI}, 0 offen')
    A(f'v_mul_u32_u24 v61, 80, v47')
    A(f'v_and_b32 v48, 3, {vL}')
    A(f'v_lshl_add_u32 v61, v48, 4, v61')
    A(f'v_mul_u32_u24 v53, 2560, v48')
    A(f'v_lshl_add_u32 v53, v62, 1, v53')
    A(f'v_add_u32 v53, {YP_OFF}, v53')
    A(f'v_and_b32 v47, 15, {vL}')
    A(f'v_mul_u32_u24 v60, 80, v47')
    A(f'v_lshrrev_b32 v49, 4, {vL}')
    A(f'v_lshl_add_u32 v60, v49, 2, v60')
    A(f's_lshl_b32 {sC}, {sW}, 4')
    A(f'v_add_u32 v60, {sC}, v60')
    A(f'v_lshrrev_b32 v47, 2, v47')
    A(f'v_mul_u32_u24 v47, 3, v47')
    A(f'v_add_u32 v47, v47, v48')
    A(f'v_lshlrev_b32 v47, 6, v47')
    A(f'v_lshl_add_u32 v47, v49, 4, v47')
    A(f's_mul_i32 {sC}, {sW}, 768\ns_add_u32 {sC}, {sC}, {H1_OFF}')
    A(f'v_add_u32 v54, {sC}, v47')
    for r in range(4):
        A(f'v_mov_b32 v{GA + r}, 0')
    tr_addr(5)
    A('s_waitcnt vmcnt(0)')
    stamp(10)
    for kk in range(12):
        for half in range(2):
            A(f'ds_read_b64_tr_b16 {vr(BW + 4 * kk + 2 * half, 2)}, v46 offset:{WT + 1024 * kk + 128 * half}')
    A(f's_cmp_lg_u32 {sW}, 0\ns_cbranch_scc1 L_noh')
    A('s_movk_i32 s16, 10240')
    hl = [f'buffer_load_dword v48, v53, {WS}, 0 offen sc1', f'buffer_load_dword v49, v53, {WS}, s16 offen sc1']
    for l in hl:
        A(l)
    A('v_lshlrev_b32 v56, 16, v56\nv_lshlrev_b32 v58, 16, v58')
    A('s_waitcnt vmcnt(0)')
    retry_loop('L_h', hl, lambda: sentinel_check(['v48', 'v49'], 'v44'))
    A('v_add_f32 v48, v48, v49')
    A(f'v_add_f32_dpp v48, v48, v48 quad_perm:[1,0,3,2] {DPPF}')
    A(f'v_add_f32_dpp v48, v48, v48 quad_perm:[2,3,0,1] {DPPF}')
    rbf('v48', 'v48')
    A('v_add_f32 v56, v56, v48')
    rbf('v56', 'v56')
    A('L_noh:')
    A('s_mov_b32 exec_lo, 0x77777777\ns_mov_b32 exec_hi, 0x77777777')
    gl = [f'buffer_load_dwordx4 {vr(GA)}, v54, {WS}, 0 offen sc1']
    A(gl[0])
    A('s_waitcnt vmcnt(0) lgkmcnt(0)')
    retry_loop('L_h1', gl, lambda: sentinel_check([f'v{GA + r}' for r in range(4)], 'v44'))
    A('s_mov_b64 exec, -1')
    stamp(11)
    for kk in range(12):
        A(f'v_mfma_f32_16x16x32_bf16 {vr(AC + 4 * kk)}, {vr(GA)}, {vr(BW + 4 * kk)}, 0')
    for g in range(4):
        a = AC + 12 * g
        A(f'v_add_f32 v{a}, v{a}, v{a + 5}')
    for g in range(4):
        a = AC + 12 * g
        A(f'v_add_f32_dpp v44, v{a + 10}, v{a} quad_perm:[0,1,2,3] row_mask:{hex(1 << g)} bank_mask:0xf')
    A(f'ds_write_b32 v60, v44 offset:{ZB}')
    A('s_waitcnt lgkmcnt(0)')
    A('s_barrier')
    A(f's_cmp_lg_u32 {sW}, 0\ns_cbranch_scc1 L_done')
    A(f'ds_read_b128 v[44:47], v61 offset:{ZB}')
    A('s_waitcnt lgkmcnt(0)')
    A('v_pk_add_f32 v[44:45], v[44:45], v[46:47]')
    A('v_add_f32 v44, v44, v45')
    A(f'v_add_f32_dpp v44, v44, v44 quad_perm:[1,0,3,2] {DPPF}')
    A(f'v_add_f32_dpp v44, v44, v44 quad_perm:[2,3,0,1] {DPPF}')
    rbf('v44', 'v44')
    A('v_add_f32 v44, v44, v58')
    rbf('v44', 'v44')
    A('v_add_f32 v44, v44, v56')
    A(f'v_mov_b32_dpp v45, v44 row_shl:4 {DPPF}')
    A('v_cvt_pk_bf16_f32 v44, v44, v45')
    A('s_mov_b32 exec_lo, 0x01010101\ns_mov_b32 exec_hi, 0x01010101')
    A(f'buffer_store_dword v44, v62, {OUT}, 0 offen')
    stamp(12)
    end()
    A('L_exit:')
    A('s_endpgm')

    head = open('cdna_kernels/' + NAME + '.s.ref').read().split('; Override launch')[0]
    head += f'; @launch grid=(256,1,1) block=(512,1,1) lds={LDS_BYTES}\n'
    head += f'.amdgcn_target "amdgcn-amd-amdhsa--gfx950"\n.text\n.globl {KN}\n.p2align 8\n.type {KN},@function\n'
    tail = f'''.section .rodata,"a"
.p2align 6
.amdhsa_kernel {KN}
  .amdhsa_next_free_vgpr 256
  .amdhsa_next_free_sgpr 102
  .amdhsa_accum_offset 256
  .amdhsa_group_segment_fixed_size 0
  .amdhsa_kernarg_size 104
  .amdhsa_user_sgpr_count 2
  .amdhsa_user_sgpr_kernarg_segment_ptr 1
  .amdhsa_system_sgpr_workgroup_id_x 1
  .amdhsa_float_denorm_mode_32 3
.end_amdhsa_kernel
'''
    return head + A.finalize() + tail


if __name__ == '__main__':
    out = sys.argv[1]
    kw = {}
    for a in sys.argv[2:]:
        k, v = a.split('=')
        kw[k] = eval(v) if k not in ('nt', 'wnt') else v
    open(out, 'w').write(gen(**kw))
```

```python
import sys
from asmlib import Asm

NAME = 'sequential_preLN__sliding_block_cached__dense_activation_squared_relu__decode'
KN = NAME + '_kernel'

DEFAULT = dict(
    depth=4,
    init_k=2,
    flag_at=8,
    boost=1,
    stamps=False,
    probe=None,
    nt='nt', wnt='nt',
    xcdmap=False,
)

REC = 1280
QP_O, OP_O, ML_O = 0, 768, 1152
YP_OFF = 256 * REC
H1_OFF = YP_OFF + 8 * 2560
WS_USED = H1_OFF + 3072
STAMP_OFF = 32 << 20

WT = 0
QB = 49152
MLB = QB + 384
HB = MLB + 512
ZB = HB + 1280
STB = ZB + 2048
CSB = STB + 64
REDB = CSB + 512
RED = 0
RSTR = 832
LDS_BYTES = REDB + 22 * RSTR

ROLES = [(0, 20), (20, 26), (26, 31)]
STAMPS = {0: 'start', 1: 'kernargs', 2: 'wq done', 3: 'q published', 4: 'flags ok', 5: 'q ready', 6: 'scores done',
          7: 'P ready', 8: 'PV done', 9: 'o published', 10: 'weights landed', 11: 'poll ok', 12: 'published', 13: 'clear acked', 14: 'dma issued'}
SPIN = 1 << 17
DPPF = 'row_mask:0xf bank_mask:0xf'


def vr(a, n=4):
    return f'v[{a}:{a + n - 1}]'


def gen(**kw):
    P = dict(DEFAULT)
    P.update(kw)
    A = Asm()
    D = P['depth']
    NT = P['nt']
    WNT = P['wnt']

    sW, sH, sI, sT, sXX = 's3', 's4', 's5', 's6', 's7'
    sKV, sOff, sRole, sRec, sM, sSpin = 's10', 's11', 's12', 's13', 's14', 's15'
    sA, sB_, sC, sD_ = 's16', 's17', 's18', 's19'
    X, K, V, WQ, WS, DBG, WTS, BI, OUT = ('s[20:23]', 's[24:27]', 's[28:31]', 's[32:35]', 's[36:39]',
                                          's[40:43]', 's[44:47]', 's[48:51]', 's[52:55]')
    sStep, sLog2e, sIdx = 's66', 's67', 's68'
    sMk = 's[8:9]'
    vL, vKo, vVo, vQo = 'v0', 'v1', 'v2', 'v3'
    MK = 4
    QOP = 8
    S = 20
    ACC = 28
    T = 44
    vRedW, vRedR, vWo = 'v60', 'v61', 'v62'
    KR, VR = 64, 160

    issued = []

    def load(text, tag):
        A(text)
        issued.append(tag)

    def wait(tag):
        n = len(issued) - 1 - issued.index(tag)
        A(f's_waitcnt vmcnt({n})')

    nstamp = [0]

    def stamp(k):
        if P['stamps'] or P['probe'] == k:
            A(f's_memrealtime s[{70 + 2 * k}:{71 + 2 * k}]')

    def dump():
        if P['stamps']:
            A('s_mov_b64 exec, -1')
            A('s_waitcnt lgkmcnt(0)')
            A('v_mov_b32 v45, 0')
            for k in range(15):
                A(f'v_writelane_b32 v45, s{70 + 2 * k}, {k}')
            A('s_getreg_b32 s16, hwreg(HW_REG_XCC_ID)')
            A('v_writelane_b32 v45, s16, 15')
            A(f's_lshl_b32 s16, s2, 3\ns_add_u32 s16, s16, {sW}\ns_lshl_b32 s16, s16, 6\ns_add_u32 s16, s16, {STAMP_OFF}')
            A(f'v_lshlrev_b32 v46, 2, {vL}\nv_add_u32 v46, s16, v46')
            A('s_mov_b64 exec, 0xffff')
            A(f'buffer_store_dword v45, v46, {WS}, 0 offen')

    def end():
        dump()
        if P['probe'] is not None:
            nstamp[0] += 1
            n = nstamp[0]
            sk = f's{70 + 2 * P["probe"]}'
            A('s_waitcnt lgkmcnt(0)')
            A(f's_cmp_lg_u32 {sW}, 0\ns_cbranch_scc1 L_pe{n}')
            A(f's_cmp_eq_u32 {sk}, 0\ns_cbranch_scc1 L_pe{n}')
            A(f'L_pl{n}:')
            A('s_sleep 4\ns_memrealtime s[100:101]\ns_waitcnt lgkmcnt(0)')
            A(f's_sub_u32 s100, s100, {sk}\ns_cmp_lt_u32 s100, 6000\ns_cbranch_scc1 L_pl{n}')
            A(f'L_pe{n}:')
        A('s_endpgm')

    def reduce64(op, regs):
        for m in ('quad_perm:[1,0,3,2] ' + DPPF, 'quad_perm:[2,3,0,1] ' + DPPF, 'row_half_mirror ' + DPPF,
                  'row_mirror ' + DPPF, 'row_bcast:15 row_mask:0xa bank_mask:0xf', 'row_bcast:31 row_mask:0xc bank_mask:0xf'):
            for r in regs:
                A(f'{op}_dpp {r}, {r}, {r} {m}')

    def rbf(dst, src):
        A(f'v_cvt_pk_bf16_f32 {dst}, {src}, {src}')
        A(f'v_and_b32 {dst}, 0xffff0000, {dst}')

    def sentinel_check(regs, tmp):
        regs = list(regs)
        if len(regs) == 2:
            A(f'v_max_u32 {tmp}, {regs[0]}, {regs[1]}')
        else:
            A(f'v_max3_u32 {tmp}, {regs[0]}, {regs[1]}, {regs[2]}')
            rest = regs[3:]
            while len(rest) >= 2:
                A(f'v_max3_u32 {tmp}, {tmp}, {rest[0]}, {rest[1]}')
                rest = rest[2:]
            if rest:
                A(f'v_max_u32 {tmp}, {tmp}, {rest[0]}')
        A(f'v_cmp_eq_u32 vcc, -1, {tmp}')

    def retry_loop(name, loads, check):
        A(f'{name}_chk:')
        check()
        A(f's_cbranch_vccz {name}_ok')
        A(f's_cmp_eq_u32 {sSpin}, 0')
        A(f's_cbranch_scc1 {name}_ok')
        A(f's_sub_u32 {sSpin}, {sSpin}, 1')
        for l in loads:
            A(l)
        A('s_waitcnt vmcnt(0)')
        A(f's_branch {name}_chk')
        A(f'{name}_ok:')

    def ln_scalars(vsum, vsq, vm, vrs, t0):
        A(f'v_mul_f32 {vm}, 0x3acccccd, {vsum}')
        A(f'v_mul_f32 {t0}, 0x3acccccd, {vsq}')
        A(f'v_fma_f32 {t0}, -{vm}, {vm}, {t0}')
        A(f'v_max_f32 {t0}, 0, {t0}')
        rbf(t0, t0)
        A(f'v_add_f32 {t0}, 0x3727c5ac, {t0}')
        rbf(t0, t0)
        A(f'v_sqrt_f32 {t0}, {t0}')
        rbf(vm, vm)
        rbf(t0, t0)
        A(f'v_rcp_f32 {vrs}, {t0}')

    A(f'{KN}:')
    if P['stamps'] or P['probe'] is not None:
        for k in range(1, 15):
            A(f's_mov_b32 s{70 + 2 * k}, 0')
    stamp(0)
    A('s_cmp_ge_u32 s2, 256')
    A('s_cbranch_scc1 L_exit')
    A('s_load_dwordx2 s[20:21], s[0:1], 0')
    A('s_load_dwordx2 s[32:33], s[0:1], 24')
    A('s_load_dwordx2 s[24:25], s[0:1], 8')
    A('s_load_dwordx2 s[36:37], s[0:1], 96')
    A('s_load_dwordx2 s[28:29], s[0:1], 16')
    A('s_load_dwordx2 s[40:41], s[0:1], 88')
    A('s_load_dwordx2 s[52:53], s[0:1], 80')
    A(f'v_lshrrev_b32 v44, 6, v0')
    A(f'v_and_b32 {vL}, 63, v0')
    A(f'v_readfirstlane_b32 {sW}, v44')
    A(f's_lshr_b32 {sT}, s2, 3')
    A(f's_and_b32 {sXX}, s2, 7')
    if P['xcdmap']:
        A(f's_and_b32 {sH}, {sT}, 3')
        A(f's_lshl2_add_u32 {sH}, {sXX}, {sH}')
        A(f's_lshr_b32 {sI}, s2, 5')
    else:
        A(f's_mov_b32 {sH}, {sT}')
        A(f's_mov_b32 {sI}, {sXX}')
    A('s_movk_i32 s22, 1280\ns_mov_b32 s23, 0x20000')
    A('s_mov_b32 s26, 402653184\ns_mov_b32 s27, 0x20000')
    A('s_mov_b32 s30, 402653184\ns_mov_b32 s31, 0x20000')
    A('s_mov_b32 s34, 7864320\ns_mov_b32 s35, 0x20000')
    A(f's_mov_b32 s38, {(64 << 20) if P["stamps"] else WS_USED}\ns_mov_b32 s39, 0x20000')
    A('s_movk_i32 s42, 256\ns_mov_b32 s43, 0x20000')
    A('s_movk_i32 s54, 1280\ns_mov_b32 s55, 0x20000')
    A(f's_mov_b32 {sSpin}, {SPIN}')
    A(f'v_lshrrev_b32 v44, 3, {vL}')
    A(f'v_and_b32 v45, 7, {vL}')
    A(f'v_lshlrev_b32 v46, 4, v45')
    A(f's_movk_i32 {sA}, 384')
    A(f'v_mad_u32_u24 {vVo}, v44, {sA}, v46')
    A(f's_movk_i32 {sB_}, 12288')
    A(f'v_mad_u32_u24 {vQo}, v44, {sB_}, v46')
    A(f'v_bfe_u32 v47, {vL}, 1, 3')
    A(f'v_lshrrev_b32 v48, 4, {vL}')
    A(f'v_and_b32 v49, 1, {vL}')
    A(f'v_lshl_add_u32 v48, v48, 1, v49')
    A(f'v_lshlrev_b32 v63, 4, v48')
    A(f'v_mad_u32_u24 {vKo}, v47, {sA}, v63')
    A(f's_mul_i32 {sKV}, {sH}, 12582912')
    A(f's_mul_i32 {sA}, {sI}, 196608')
    A(f's_add_u32 {sKV}, {sKV}, {sA}')
    A(f's_mul_i32 {sA}, {sW}, 24576')
    A(f's_add_u32 {sKV}, {sKV}, {sA}')
    A(f's_add_u32 {sKV}, {sKV}, {28672 * 384}')
    A(f's_lshl3_add_u32 {sRec}, {sH}, {sI}')
    A(f's_mul_i32 {sRec}, {sRec}, {REC}')
    A(f's_mul_i32 {sA}, {sI}, 80')
    A(f's_lshl3_add_u32 {sB_}, {sW}, {sA}')
    A(f's_mul_i32 {sC}, {sW}, 43')
    A(f's_lshr_b32 {sC}, {sC}, 7')
    A(f's_mul_i32 {sD_}, {sC}, 3')
    A(f's_sub_u32 {sD_}, {sW}, {sD_}')
    A(f's_lshl3_add_u32 {sA}, {sC}, {sA}')
    A(f's_add_u32 {sA}, {sA}, 64')
    A(f'v_add_lshl_u32 v50, v44, {sB_}, 1')
    A(f'v_add_lshl_u32 v51, v44, {sA}, 1')
    A(f'v_lshlrev_b32 v52, 4, {vL}')
    A(f'v_lshlrev_b32 v53, 2, {vL}')
    A(f's_mul_i32 {sM}, {sH}, 384')
    A(f's_mul_i32 {sB_}, {sB_}, 12288')
    A(f's_add_u32 {sB_}, {sB_}, {sM}')
    A(f's_mul_i32 {sA}, {sA}, 12288')
    A(f's_add_u32 {sA}, {sA}, {sM}')
    A(f's_lshl_b32 {sM}, {sD_}, 7')
    A(f's_add_u32 {sA}, {sA}, {sM}')
    A(f's_cmp_lt_u32 {sW}, 6')
    A(f's_cselect_b32 {sA}, {sA}, 0x80000000')
    A(f'v_add_u32 v54, {sA}, {vQo}')
    A(f's_cmp_ge_u32 {sT}, 20\ns_cselect_b32 {sRole}, 1, 0')
    A(f's_cmp_ge_u32 {sT}, 26\ns_cselect_b32 {sRole}, 2, {sRole}')
    A(f's_cmp_ge_u32 {sT}, 31\ns_cselect_b32 {sRole}, 3, {sRole}')
    A(f's_mul_i32 {sIdx}, {sXX}, 6\ns_add_u32 {sIdx}, {sIdx}, {sT}\ns_sub_u32 {sIdx}, {sIdx}, 20')
    A(f's_mul_i32 {sM}, {sXX}, 5\ns_add_u32 {sM}, {sM}, {sT}\ns_sub_u32 {sM}, {sM}, 26')
    A(f's_cmp_eq_u32 {sRole}, 2\ns_cselect_b32 {sIdx}, {sM}, {sIdx}')
    A(f's_cmp_eq_u32 {sRole}, 0\ns_cselect_b32 {sIdx}, {sT}, {sIdx}')
    A('s_waitcnt lgkmcnt(0)')
    stamp(1)
    A('s_load_dwordx4 s[56:59], s[0:1], 48')
    A('s_load_dwordx4 s[60:63], s[0:1], 64')
    A('s_load_dwordx2 s[64:65], s[0:1], 32')

    XA, XB, XE0, XE1 = 8, 12, 13, 14
    load(f'buffer_load_dwordx4 {vr(XA)}, v52, {X}, 0 offen', 'xa')
    load(f'buffer_load_dword v{XB}, v53, {X}, 0 offen offset:1024', 'xb')
    load(f'buffer_load_ushort v{XE0}, v50, {X}, 0 offen', 'xe0')
    load(f'buffer_load_ushort v{XE1}, v51, {X}, 0 offen', 'xe1')
    for s in range(3):
        load(f'buffer_load_dwordx4 {vr(VR + 4 * s)}, {vQo}, {WQ}, {sB_} offen offset:{128 * s} {NT}', f'wq{s}')
    load(f'buffer_load_dwordx4 {vr(VR + 12)}, v54, {WQ}, 0 offen {NT}', 'wq3')

    stream = [('K', g, s) for g in range(8) for s in range(3)] + [('V', g, s) for g in range(8) for s in range(3)]
    pos = [0]

    def issue_next():
        if pos[0] >= len(stream):
            return False
        kind, g, s = stream[pos[0]]
        pos[0] += 1
        if kind == 'W':
            if g == 0:
                A(f's_mov_b32 {sOff}, 0')
            else:
                A(f's_add_u32 {sOff}, {sOff}, {sStep}')
            A(f's_add_u32 m0, {sD_}, {1024 * g}')
            load(f'buffer_load_dwordx4 {vWo}, {WTS}, {sOff} offen {WNT} lds', (kind, g, s))
            return True
        if s == 0:
            A(f's_add_u32 {sOff}, {sKV}, {3072 * g}')
        base, vo, srd = (KR, vKo, K) if kind == 'K' else (VR, vVo, V)
        load(f'buffer_load_dwordx4 {vr(base + 12 * g + 4 * s)}, {vo}, {srd}, {sOff} offen offset:{128 * s} {NT}', (kind, g, s))
        return True

    done = [-1]

    def fill(extra=0):
        while pos[0] < len(stream) and pos[0] - (done[0] + 1) < D + extra:
            issue_next()

    def step():
        done[0] += 1
        wait(stream[done[0]])
        fill()

    def step_until(idx):
        while done[0] < idx:
            step()

    for _ in range(P['init_k']):
        issue_next()

    A(f's_cmp_lg_u32 {sW}, 7')
    A('s_cbranch_scc1 L_noclear')
    A('v_mov_b32 v56, -1\nv_mov_b32 v57, -1\nv_mov_b32 v58, -1\nv_mov_b32 v59, -1')
    A(f'v_add_u32 v55, {sRec}, v52')
    A(f'buffer_store_dwordx4 v[56:59], v55, {WS}, 0 offen sc1')
    A(f's_mul_i32 {sA}, {sXX}, 2560\ns_lshl_b32 {sM}, {sIdx}, 7\ns_add_u32 {sA}, {sA}, {sM}\ns_add_u32 {sA}, {sA}, {YP_OFF - 256}')
    A(f's_lshl_b32 {sM}, {sIdx}, 6\ns_add_u32 {sM}, {sM}, {H1_OFF - 256}')
    A(f's_cmp_eq_u32 {sRole}, 0\ns_cselect_b32 {sA}, {sA}, {sM}')
    A(f's_cselect_b32 {sM}, 24, 20')
    A(f's_cmp_ge_u32 {sRole}, 2\ns_cselect_b32 {sM}, 16, {sM}')
    A(f'v_add_u32 v55, 1024, v55')
    A(f'v_add_u32 v47, {sA}, v52')
    A(f'v_cmp_gt_u32 vcc, 16, {vL}')
    A(f'v_cndmask_b32 v55, v47, v55, vcc')
    A(f'v_cmp_gt_u32 vcc, {sM}, {vL}')
    A('s_and_saveexec_b64 s[8:9], vcc')
    A(f'buffer_store_dwordx4 v[56:59], v55, {WS}, 0 offen sc1')
    A('s_mov_b64 exec, -1')
    A('L_noclear:')

    A(f'v_lshlrev_b32 v47, 4, v49')
    A(f'v_mov_b32 v48, 0xffff')
    A(f'v_lshlrev_b32 v47, v47, v48')
    A(f'v_lshrrev_b32 v48, 1, v45')
    for r in range(4):
        A(f'v_cmp_eq_u32 vcc, {r}, v48')
        A(f'v_cndmask_b32 v{MK + r}, 0, v47, vcc')
    A(f'v_lshrrev_b32 v47, 5, {vL}')
    A(f's_lshl_b32 {sA}, {sW}, 1')
    A(f'v_add_u32 v47, {sA}, v47')
    A(f'v_mul_u32_u24 v47, {RSTR}, v47')
    A(f'v_bfe_u32 v48, {vL}, 4, 1')
    A(f'v_lshl_add_u32 v48, v45, 1, v48')
    A(f'v_lshl_add_u32 {vRedW}, v48, 4, v47')
    A(f'v_add_u32 {vRedW}, {REDB}, {vRedW}')
    A(f's_lshl_b32 {sC}, {sC}, 1\ns_add_u32 {sC}, {sC}, 16\ns_sub_u32 {sC}, {sC}, {sA}\ns_mul_i32 {sC}, {sC}, {RSTR}')
    A(f's_lshl_b32 {sD_}, {sD_}, 8\ns_add_u32 {sC}, {sC}, {sD_}')
    A(f'v_add_u32 v55, {sC}, {vRedW}')
    A(f'v_and_b32 v47, 3, {vL}')
    A(f'v_mul_u32_u24 v47, {RSTR}, v47')
    A(f'v_lshrrev_b32 v48, 2, {vL}')
    A(f'v_lshl_add_u32 v47, v48, 4, v47')
    A(f's_lshl_b32 {sA}, {sW}, 8\ns_add_u32 {sA}, {sA}, {REDB - 1024}')
    A(f'v_add_u32 {vRedR}, {sA}, v47')
    A(f's_mov_b32 {sLog2e}, 0x3fb8aa3b')

    wait('xb')
    A(f's_mov_b32 {sA}, 0x3f803f80')
    A(f'v_dot2_f32_bf16 v47, v{XA}, {sA}, 0')
    A(f'v_dot2_f32_bf16 v48, v{XA}, v{XA}, 0')
    for r in range(1, 5):
        A(f'v_dot2_f32_bf16 v47, v{XA + r}, {sA}, v47')
        A(f'v_dot2_f32_bf16 v48, v{XA + r}, v{XA + r}, v48')
    reduce64('v_add_f32', ['v47', 'v48'])
    A(f'v_readlane_b32 {sA}, v47, 63')
    A(f'v_readlane_b32 {sB_}, v48, 63')
    A(f'v_mov_b32 v47, {sA}')
    A(f'v_mov_b32 v48, {sB_}')
    ln_scalars('v47', 'v48', 'v50', 'v51', 'v52')
    wait('xe1')
    for n, xe in enumerate((XE0, XE1)):
        A(f'v_lshlrev_b32 v{xe}, 16, v{xe}')
        A(f'v_sub_f32 v{xe}, v{xe}, v50')
        rbf(f'v{xe}', f'v{xe}')
        A(f'v_mul_f32 v{xe}, v{xe}, v51')
        A(f'v_cvt_pk_bf16_f32 v{xe}, v{xe}, v{xe}')
        for r in range(4):
            A(f'v_and_b32 v{S + 4 * n + r}, v{xe}, v{MK + r}')
    for s in range(4):
        wait(f'wq{s}')
        if pos[0] < D + P['boost']:
            issue_next()
        A(f'v_mfma_f32_16x16x32_bf16 {vr(ACC + 4 * s)}, {vr(S + (4 if s == 3 else 0))}, {vr(VR + 4 * s)}, 0')
    stamp(2)
    fill(P['boost'])
    A(f's_cmp_lg_u32 {sW}, 7')
    A('s_cbranch_scc1 L_noflag')
    A('s_waitcnt vmcnt(0)')
    stamp(13)
    A('v_mov_b32 v47, 1\nv_mov_b32 v48, s2')
    A('s_mov_b64 exec, 1')
    A(f'buffer_store_byte v47, v48, {DBG}, 0 offen sc1')
    A('L_noflag:')
    A('s_mov_b32 exec_lo, 0x00ff00ff\ns_mov_b32 exec_hi, 0xff00ff00')
    for s in range(3):
        A(f'ds_write_b128 {vRedW}, {vr(ACC + 4 * s)} offset:{RED + 256 * s}')
    A(f'ds_write_b128 v55, {vr(ACC + 12)} offset:{RED}')
    A('s_mov_b64 exec, -1')
    A('s_waitcnt lgkmcnt(0)')
    A('s_barrier')
    A(f's_sub_u32 {sA}, {sW}, 4')
    A(f's_cmp_gt_u32 {sA}, 2')
    A('s_cbranch_scc1 L_noqpub')
    for n in range(5):
        A(f'ds_read_b128 {vr(S + 4 * n)}, {vRedR} offset:{RED + 4 * n * RSTR}')
    A(f's_lshl_b32 {sA}, {sA}, 8\ns_add_u32 {sA}, {sA}, {sRec}')
    A(f'v_lshlrev_b32 v47, 2, {vL}')
    A(f'v_add_u32 v47, {sA}, v47')
    A('s_waitcnt lgkmcnt(0)')
    for n in range(1, 5):
        for h in (0, 2):
            A(f'v_pk_add_f32 {vr(S + h, 2)}, {vr(S + h, 2)}, {vr(S + 4 * n + h, 2)}')
    for m in ('quad_perm:[1,0,3,2]', 'quad_perm:[2,3,0,1]'):
        for r in range(4):
            A(f'v_add_f32_dpp v{S + r}, v{S + r}, v{S + r} {m} {DPPF}')
    A('s_mov_b32 exec_lo, 0x11111111\ns_mov_b32 exec_hi, 0x11111111')
    A(f'buffer_store_dwordx4 {vr(S)}, v47, {WS}, 0 offen offset:{QP_O} sc1')
    A('s_mov_b64 exec, -1')
    A('L_noqpub:')
    stamp(3)

    A(f's_mov_b32 s46, 1966080\ns_mov_b32 {sStep}, 40960\ns_movk_i32 s50, 1280')
    A(f's_cmp_eq_u32 {sRole}, 0')
    A('s_cselect_b32 s44, s64, s60\ns_cselect_b32 s45, s65, s61')
    A('s_cselect_b32 s46, 7864320, s46')
    A(f's_cselect_b32 {sStep}, 20480, {sStep}')
    A(f's_cmp_eq_u32 {sRole}, 1')
    A('s_cselect_b32 s44, s56, s44\ns_cselect_b32 s45, s57, s45')
    A(f's_cselect_b32 {sStep}, 49152, {sStep}')
    A('s_cselect_b32 s48, s58, s62\ns_cselect_b32 s49, s59, s63')
    A('s_cselect_b32 s50, 3072, s50')
    A(f's_mov_b32 {sB_}, s50')
    A(f's_cselect_b32 {sA}, 10, 12')
    A('s_mov_b32 s47, 0x20000\ns_mov_b32 s51, 0x20000')
    A(f's_cmp_eq_u32 {sRole}, 3')
    A('s_cselect_b32 s46, 0, s46')
    A(f's_mul_i32 {sA}, {sA}, {sStep}')
    A(f's_and_b32 {sD_}, {sW}, 3')
    A(f's_mul_i32 {sA}, {sA}, {sD_}')
    A(f's_mul_i32 {sC}, {sXX}, {768 * 1280}')
    A(f's_cmp_eq_u32 {sRole}, 0\ns_cselect_b32 {sC}, {sC}, 0')
    A(f's_add_u32 {sA}, {sA}, {sC}')
    A(f's_cmp_eq_u32 {sRole}, 2\ns_cselect_b32 {sC}, 5, 6\ns_cselect_b32 {sM}, 1, 2')
    A(f's_lshl_b32 {sC}, {sIdx}, {sC}')
    A(f's_add_u32 {sA}, {sA}, {sC}')
    A(f'v_lshrrev_b32 v47, {sM}, {vL}')
    A(f'v_mul_lo_u32 v48, v47, {sB_}')
    A(f'v_lshlrev_b32 v47, {sM}, v47')
    A(f'v_sub_u32 v47, {vL}, v47')
    A(f'v_lshl_add_u32 v48, v47, 4, v48')
    A(f'v_add_u32 {vWo}, {sA}, v48')
    A(f's_mul_i32 {sD_}, {sD_}, 12288')

    step_until(P['flag_at'] - D)
    fl = f'buffer_load_dword v44, v53, {DBG}, 0 offen sc1'
    load(fl, 'flag')
    mark = pos[0] - 1
    A(f's_lshl_b32 {sA}, {sH}, 3')
    A(f'v_add_u32 v47, {sA}, v45')
    A(f'v_mul_u32_u24 v47, {REC}, v47')
    A(f'v_lshrrev_b32 v48, 3, {vL}')
    A(f'v_lshl_add_u32 v47, v48, 4, v47')
    A(f's_mul_i32 {sA}, {sW}, 96')
    A(f'v_add_u32 v47, {sA}, v47')
    A(f's_lshr_b32 {sA}, {sA}, 1')
    A(f'v_lshl_add_u32 v46, v48, 3, {sA}')
    step_until(mark)
    wait('flag')
    retry_loop('L_flag', [fl], lambda: A(f'v_cmp_ne_u32 vcc, 0x01010101, v44'))
    stamp(4)
    A('s_mov_b32 exec_hi, 0xffff')
    ql = f'buffer_load_dwordx4 {vr(S)}, v47, {WS}, 0 offen offset:{QP_O} sc1'
    load(ql, 'qg')
    A('s_mov_b32 exec_hi, -1')
    mark = pos[0] - 1
    step_until(mark)
    fill(P['boost'])
    wait('qg')
    A('s_mov_b32 exec_hi, 0xffff')
    retry_loop('L_qg', [ql], lambda: sentinel_check([f'v{S + r}' for r in range(4)], 'v44'))
    for m in ('quad_perm:[1,0,3,2]', 'quad_perm:[2,3,0,1]', 'row_half_mirror'):
        for r in range(4):
            A(f'v_add_f32_dpp v{S + r}, v{S + r}, v{S + r} {m} {DPPF}')
    A(f'v_cvt_pk_bf16_f32 v{S}, v{S}, v{S + 1}')
    A(f'v_cvt_pk_bf16_f32 v{S + 1}, v{S + 2}, v{S + 3}')
    A(f'ds_write_b64 v46, {vr(S, 2)} offset:{QB}')
    A('s_mov_b32 exec_hi, -1')
    A('s_waitcnt lgkmcnt(0)')
    A('s_barrier')
    for s in range(3):
        A(f'ds_read_b128 {vr(QOP + 4 * s)}, v63 offset:{QB + 128 * s}')
    A('s_mov_b32 s8, 0xff00ff00\ns_mov_b32 s9, 0xff00ff00')
    A(f's_mov_b32 {sA}, 0xaaaaaaaa\ns_mov_b32 {sB_}, 0xaaaaaaaa')
    A('s_waitcnt lgkmcnt(0)')
    stamp(5)

    for g in range(8):
        step_until(3 * g + 2)
        if g == 7:
            fill(P['boost'])
        for s in range(3):
            A(f'v_mfma_f32_16x16x32_bf16 {vr(T)}, {vr(KR + 12 * g + 4 * s)}, {vr(QOP + 4 * s)}, {vr(T) if s else 0}')
        A(f'v_cndmask_b32 v{T}, v{T}, v{T + 2}, {sMk}')
        A(f'v_cndmask_b32 v{T + 1}, v{T + 1}, v{T + 3}, {sMk}')
        A(f'v_cndmask_b32 v{T}, v{T}, v{T + 1}, s[16:17]')
        A(f'v_add_f32_dpp v{T}, v{T}, v{T} quad_perm:[1,0,3,2] {DPPF}')
        rbf(f'v{T}', f'v{T}')
        A(f'v_mul_f32 v{T}, 0x3d93cd3a, v{T}')
        rbf(f'v{S + g}', f'v{T}')
    stamp(6)
    A(f'v_max3_f32 v44, v{S}, v{S + 1}, v{S + 2}')
    A(f'v_max3_f32 v44, v44, v{S + 3}, v{S + 4}')
    A(f'v_max3_f32 v44, v44, v{S + 5}, v{S + 6}')
    A(f'v_max_f32 v44, v44, v{S + 7}')
    A(f'v_mul_f32 v44, {sLog2e}, v44')
    for g in range(8):
        A(f'v_fma_f32 v{S + g}, v{S + g}, {sLog2e}, -v44')
    for g in range(8):
        A(f'v_exp_f32 v{S + g}, v{S + g}')
    A(f'v_and_b32 v46, 0x38, {vL}')
    A(f's_lshl_b32 {sA}, {sW}, 6')
    A(f'v_add_u32 v46, {sA}, v46')
    A(f'v_add_f32 v45, v{S}, v{S + 1}')
    for g in range(2, 8):
        A(f'v_add_f32 v45, v45, v{S + g}')
    A(f'ds_write_b64 v46, v[44:45] offset:{MLB}')
    A(f'v_lshlrev_b32 v46, 3, {vL}')
    A('s_waitcnt lgkmcnt(0)')
    A('s_barrier')
    A(f'ds_read_b64 v[48:49], v46 offset:{MLB}')
    A('s_waitcnt lgkmcnt(0)')
    A('v_mov_b32 v50, v48')
    reduce64('v_max_f32', ['v50'])
    A(f'v_readlane_b32 {sM}, v50, 63')
    A(f'v_subrev_f32 v44, {sM}, v44')
    A('v_exp_f32 v44, v44')
    A(f's_cmp_lg_u32 {sW}, 7')
    A('s_cbranch_scc1 L_nomlpub')
    A(f'v_subrev_f32 v48, {sM}, v48')
    A('v_exp_f32 v48, v48')
    A('v_mul_f32 v51, v48, v49')
    reduce64('v_add_f32', ['v51'])
    A(f'v_mov_b32 v46, {sRec}')
    A('s_mov_b32 exec_lo, 0\ns_mov_b32 exec_hi, 0x80000000')
    A(f'buffer_store_dwordx2 v[50:51], v46, {WS}, 0 offen offset:{ML_O} sc1')
    A('s_mov_b64 exec, -1')
    A('L_nomlpub:')
    for g in range(8):
        A(f'v_mul_f32 v{S + g}, v{S + g}, v44')
        A(f'v_cvt_pk_bf16_f32 v{S + g}, v{S + g}, v{S + g}')
        for r in range(4):
            A(f'v_and_b32 v{KR + 4 * g + r}, v{S + g}, v{MK + r}')
    stamp(7)

    def pv(idx):
        step_until(idx)
        _, g, s = stream[idx]
        A(f'v_mfma_f32_16x16x32_bf16 {vr(ACC + 4 * s)}, {vr(KR + 4 * g)}, {vr(VR + 12 * g + 4 * s)}, {vr(ACC + 4 * s) if g else 0}')

    idx = 24
    while pos[0] < 48:
        pv(idx)
        idx += 1

    def finish_pv():
        A('s_mov_b32 exec_lo, 0x00ff00ff\ns_mov_b32 exec_hi, 0xff00ff00')
        for s in range(3):
            A(f'ds_write_b128 {vRedW}, {vr(ACC + 4 * s)} offset:{RED + 256 * s}')
        A('s_mov_b64 exec, -1')

    A(f's_cmp_lt_u32 {sW}, 4')
    A('s_cbranch_scc1 L_lowwaves')
    save = (list(issued), pos[0], done[0])
    for k in range(idx, 48):
        pv(k)
    stamp(8)
    finish_pv()
    A(f's_sub_u32 {sA}, {sW}, 4\ns_lshl_b32 {sA}, {sA}, 7\ns_add_u32 {sA}, {sA}, {sRec}')
    A(f'v_lshlrev_b32 v47, 1, {vL}')
    A(f'v_add_u32 v47, {sA}, v47')
    A('s_waitcnt lgkmcnt(0)')
    A('s_barrier')
    A(f's_cmp_eq_u32 {sW}, 7')
    A('s_cbranch_scc1 L_done')
    for n in range(4):
        A(f'ds_read_b128 {vr(S + 4 * n)}, {vRedR} offset:{RED + 4 * n * RSTR}')
    A('s_waitcnt lgkmcnt(0)')
    for h in (0, 2):
        A(f'v_pk_add_f32 {vr(S + h, 2)}, {vr(S + h, 2)}, {vr(S + 4 + h, 2)}')
        A(f'v_pk_add_f32 {vr(S + 8 + h, 2)}, {vr(S + 8 + h, 2)}, {vr(S + 12 + h, 2)}')
    for h in (0, 2):
        A(f'v_pk_add_f32 {vr(S + h, 2)}, {vr(S + h, 2)}, {vr(S + 8 + h, 2)}')
    for m in ('quad_perm:[1,0,3,2]', 'quad_perm:[2,3,0,1]'):
        for r in range(4):
            A(f'v_add_f32_dpp v{S + r}, v{S + r}, v{S + r} {m} {DPPF}')
    A(f'v_cvt_pk_bf16_f32 v{S}, v{S}, v{S + 1}')
    A(f'v_cvt_pk_bf16_f32 v{S + 1}, v{S + 2}, v{S + 3}')
    A(f'v_mov_b32_dpp v{S + 2}, v{S} row_shl:4 {DPPF}')
    A(f'v_mov_b32_dpp v{S + 3}, v{S + 1} row_shl:4 {DPPF}')
    A('s_mov_b32 exec_lo, 0x01010101\ns_mov_b32 exec_hi, 0x01010101')
    A(f'buffer_store_dwordx4 {vr(S)}, v47, {WS}, 0 offen offset:{OP_O} sc1')
    stamp(9)
    A('L_done:')
    end()

    A('L_lowwaves:')
    issued[:], pos[0], done[0] = save
    stream.extend(('W', n, 0) for n in range(10))
    for k in range(idx, 48):
        pv(k)
    stamp(8)
    finish_pv()
    A('s_waitcnt lgkmcnt(0)')
    A('s_barrier')
    while issue_next():
        pass
    A(f's_cmp_eq_u32 {sRole}, 1')
    A('s_cbranch_scc1 L_skipw')
    stream.extend(('W', n, 0) for n in (10, 11))
    while issue_next():
        pass
    A('L_skipw:')
    stamp(14)
    A(f's_cmp_eq_u32 {sRole}, 1\ns_cbranch_scc1 L_ffn1')
    A(f's_cmp_eq_u32 {sRole}, 2\ns_cbranch_scc1 L_ffn2')
    A(f's_cmp_eq_u32 {sRole}, 3\ns_cbranch_scc1 L_done')

    BW = 96
    GA = 144
    AC = 160

    def tr_addr(rowbytes_log2):
        A(f'v_lshrrev_b32 v46, 4, {vL}')
        A(f'v_bfe_u32 v47, {vL}, 2, 2')
        A(f'v_lshl_add_u32 v46, v46, 3, v47')
        A(f'v_lshlrev_b32 v46, {rowbytes_log2}, v46')
        A(f'v_and_b32 v47, 3, {vL}')
        A(f'v_lshl_add_u32 v46, v47, 3, v46')
        A(f'v_add_u32 v46, {sD_}, v46')

    A(f's_lshl2_add_u32 {sA}, {sXX}, {sW}')
    A(f's_mul_i32 {sA}, {sA}, {8 * REC}')
    A(f'v_bfe_u32 v47, {vL}, 4, 1')
    A(f'v_and_b32 v48, 3, {vL}')
    A(f'v_lshl_add_u32 v47, v47, 2, v48')
    A(f'v_xor_b32 v48, 4, v47')
    A(f'v_mul_u32_u24 v52, {REC}, v47')
    A(f'v_mul_u32_u24 v53, {REC}, v48')
    ml = [f'buffer_load_dwordx2 v[56:57], v52, {WS}, {sA} offen offset:{ML_O} sc1',
          f'buffer_load_dwordx2 v[58:59], v53, {WS}, {sA} offen offset:{ML_O} sc1']
    for l in ml:
        A(l)
    A(f'v_and_b32 v47, 7, {vL}')
    A(f'v_mul_u32_u24 v54, {REC}, v47')
    A(f'v_bfe_u32 v47, {vL}, 3, 1')
    A(f'v_lshl_add_u32 v54, v47, 6, v54')
    A(f'v_lshrrev_b32 v47, 4, {vL}')
    A(f'v_lshl_add_u32 v54, v47, 4, v54')
    ol = [f'buffer_load_dwordx4 {vr(GA + 4 * n)}, v54, {WS}, {sA} offen offset:{OP_O + 128 * n} sc1' for n in range(3)]
    for l in ol:
        A(l)
    tr_addr(6)
    A('s_waitcnt vmcnt(5)')
    stamp(10)
    for kk in range(6):
        for t in range(2):
            for half in range(2):
                A(f'ds_read_b64_tr_b16 {vr(BW + 8 * kk + 4 * t + 2 * half, 2)}, v46 offset:{WT + 2048 * kk + 256 * half + 32 * t}')
    A(f'v_lshrrev_b32 v47, 5, {vL}')
    A(f'v_and_b32 v48, 15, {vL}')
    A(f'v_lshl_add_u32 v47, v47, 4, v48')
    A(f'v_mul_u32_u24 v47, 48, v47')
    A(f'v_bfe_u32 v48, {vL}, 4, 1')
    A(f'v_lshl_add_u32 v47, v48, 2, v47')
    A(f's_lshl_b32 {sB_}, {sW}, 3')
    A(f'v_add_u32 v60, {sB_}, v47')
    A(f'v_lshrrev_b32 v47, 1, {vL}')
    A(f'v_mul_u32_u24 v61, 48, v47')
    A(f'v_and_b32 v48, 1, {vL}')
    A(f'v_lshl_add_u32 v61, v48, 4, v61')
    A(f's_mul_i32 {sB_}, {sXX}, 2560\ns_lshl_b32 {sC}, {sIdx}, 7\ns_add_u32 {sB_}, {sB_}, {sC}\ns_add_u32 {sB_}, {sB_}, {YP_OFF}')
    A(f'v_lshl_add_u32 v62, v47, 2, {sB_}')
    A('s_waitcnt vmcnt(3)')
    retry_loop('L_ml', ml, lambda: sentinel_check(['v56', 'v57', 'v58', 'v59'], 'v44'))
    A('v_max_f32 v44, v56, v58')
    A(f'v_max_f32_dpp v44, v44, v44 quad_perm:[1,0,3,2] {DPPF}')
    A(f'v_max_f32_dpp v44, v44, v44 quad_perm:[2,3,0,1] {DPPF}')
    A('v_sub_f32 v56, v56, v44\nv_sub_f32 v58, v58, v44')
    A('v_exp_f32 v56, v56\nv_exp_f32 v58, v58')
    A('v_mul_f32 v44, v56, v57\nv_fmac_f32 v44, v58, v59')
    A(f'v_add_f32_dpp v44, v44, v44 quad_perm:[1,0,3,2] {DPPF}')
    A(f'v_add_f32_dpp v44, v44, v44 quad_perm:[2,3,0,1] {DPPF}')
    A('v_rcp_f32 v44, v44')
    A('v_mul_f32 v44, v56, v44')
    for r in range(4):
        A(f'v_mov_b32_dpp v{56 + r}, v44 quad_perm:[{r},{r},{r},{r}] {DPPF}')
    A('s_mov_b32 s8, 0\ns_mov_b32 s9, -1')
    A('s_waitcnt vmcnt(0) lgkmcnt(0)')
    retry_loop('L_op', ol, lambda: sentinel_check([f'v{GA + r}' for r in range(12)], 'v44'))
    stamp(11)
    for kk in range(6):
        for t in range(2):
            a = AC + 8 * t + 4 * (kk & 1)
            A(f'v_mfma_f32_16x16x32_bf16 {vr(a)}, {vr(GA + 4 * (kk >> 1))}, {vr(BW + 8 * kk + 4 * t)}, {vr(a) if kk >= 2 else 0}')
    for t in range(2):
        for r in range(4):
            A(f'v_cndmask_b32 v{AC + 8 * t + r}, v{AC + 8 * t + r}, v{AC + 8 * t + 4 + r}, {sMk}')
        A(f'v_mul_f32 v{44 + t}, v56, v{AC + 8 * t}')
        for r in range(1, 4):
            A(f'v_fmac_f32 v{44 + t}, v{56 + r}, v{AC + 8 * t + r}')
    A('v_permlane32_swap_b32 v44, v45')
    A('v_add_f32 v44, v44, v45')
    A(f'ds_write_b32 v60, v44 offset:{ZB}')
    A('s_waitcnt lgkmcnt(0)')
    A('s_barrier')
    A(f's_cmp_lg_u32 {sW}, 0\ns_cbranch_scc1 L_done')
    A(f'ds_read_b128 v[44:47], v61 offset:{ZB}')
    A('s_waitcnt lgkmcnt(0)')
    A('v_pk_add_f32 v[44:45], v[44:45], v[46:47]')
    A('v_add_f32 v44, v44, v45')
    A(f'v_add_f32_dpp v44, v44, v44 quad_perm:[1,0,3,2] {DPPF}')
    A(f'v_mov_b32_dpp v45, v44 row_shl:2 {DPPF}')
    A(f'v_mov_b32_dpp v46, v44 row_shl:4 {DPPF}')
    A(f'v_mov_b32_dpp v47, v44 row_shl:6 {DPPF}')
    A('s_mov_b32 exec_lo, 0x01010101\ns_mov_b32 exec_hi, 0x01010101')
    A(f'buffer_store_dwordx4 v[44:47], v62, {WS}, 0 offen sc1')
    stamp(12)
    end()

    A('L_ffn1:')
    A(f's_mul_i32 {sA}, {sW}, 320')
    A(f'v_lshl_add_u32 v52, {vL}, 3, {sA}')
    A(f's_lshl_b32 {sB_}, {sIdx}, 6')
    A(f'v_and_b32 v47, 31, {vL}')
    A(f'v_lshl_add_u32 v53, v47, 1, {sB_}')
    A(f'buffer_load_dwordx2 v[56:57], v52, {X}, 0 offen')
    A(f'buffer_load_ushort v58, v53, {BI}, 0 offen')
    tr_addr(6)
    A(f'v_lshlrev_b32 v54, 1, v52')
    A(f'v_add_u32 v54, {YP_OFF}, v54')
    A(f'v_and_b32 v47, 31, {vL}')
    A(f'v_lshlrev_b32 v61, 4, v47')
    A(f's_lshl_b32 {sC}, {sW}, 2')
    A(f'v_add_u32 v60, {sC}, v61')
    A(f'v_lshrrev_b32 v47, 4, {vL}')
    A(f'v_lshl_add_u32 v55, v47, 4, {sA}')
    A(f's_lshl_b32 {sC}, {sW}, 3')
    A(f'v_mov_b32 v63, {sC}')
    A(f'v_add_u32 v62, {H1_OFF}, v53')
    for r in range(4):
        A(f'v_mov_b32 v{GA + r}, 0x3f803f80')
    A('s_waitcnt vmcnt(0)')
    stamp(10)
    for kk in range(5):
        for t in range(2):
            for half in range(2):
                A(f'ds_read_b64_tr_b16 {vr(BW + 8 * kk + 4 * t + 2 * half, 2)}, v46 offset:{WT + 2048 * kk + 256 * half + 32 * t}')
    A('v_lshlrev_b32 v8, 16, v56\nv_and_b32 v9, 0xffff0000, v56')
    A('v_lshlrev_b32 v10, 16, v57\nv_and_b32 v11, 0xffff0000, v57')
    A('v_lshlrev_b32 v58, 16, v58')
    A('s_mov_b32 s8, 0xffff0000\ns_mov_b32 s9, 0xffff0000')
    A('s_waitcnt lgkmcnt(0)')
    for kk in range(5):
        for t in range(2):
            a = ACC + 4 * t
            A(f'v_mfma_f32_16x16x32_bf16 {vr(a)}, {vr(GA)}, {vr(BW + 8 * kk + 4 * t)}, {vr(a) if kk else 0}')
    A(f'v_cndmask_b32 v44, v{ACC}, v{ACC + 4}, {sMk}')
    A(f'ds_write_b32 v60, v44 offset:{CSB}')
    A('s_waitcnt lgkmcnt(0)')
    A('s_barrier')
    A(f'ds_read_b128 v[44:47], v61 offset:{CSB}')
    yl = [f'buffer_load_dwordx4 {vr(AC + 4 * n)}, v54, {WS}, {"0" if n < 2 else "s" + str(15 + n // 2)} offen offset:{2560 * (n & 1)} sc1' for n in range(8)]
    A('s_movk_i32 s16, 5120\ns_movk_i32 s17, 10240\ns_movk_i32 s18, 15360')
    A('s_mov_b32 exec_hi, 0xff')
    for l in yl:
        A(l)
    A('s_waitcnt lgkmcnt(0)')
    A('v_pk_add_f32 v[44:45], v[44:45], v[46:47]')
    A('v_add_f32 v59, v44, v45')
    A('s_waitcnt vmcnt(0)')
    retry_loop('L_yp', yl, lambda: sentinel_check([f'v{AC + r}' for r in range(32)], 'v44'))
    stamp(11)
    for st in (4, 8, 16):
        for n in range(0, 32, 2 * st):
            for h in (0, 2):
                A(f'v_pk_add_f32 {vr(AC + n + h, 2)}, {vr(AC + n + h, 2)}, {vr(AC + n + st + h, 2)}')
    A(f'v_cvt_pk_bf16_f32 v44, v{AC}, v{AC + 1}')
    A(f'v_cvt_pk_bf16_f32 v45, v{AC + 2}, v{AC + 3}')
    A('v_lshlrev_b32 v48, 16, v44\nv_and_b32 v49, 0xffff0000, v44')
    A('v_lshlrev_b32 v50, 16, v45\nv_and_b32 v51, 0xffff0000, v45')
    A('v_pk_add_f32 v[48:49], v[48:49], v[8:9]')
    A('v_pk_add_f32 v[50:51], v[50:51], v[10:11]')
    A('v_cvt_pk_bf16_f32 v44, v48, v49')
    A('v_cvt_pk_bf16_f32 v45, v50, v51')
    A(f'ds_write_b64 v52, v[44:45] offset:{HB}')
    A('s_mov_b32 exec_hi, -1')
    A('v_mov_b32 v48, 0\nv_mov_b32 v49, 0')
    A('s_waitcnt lgkmcnt(0)')
    for kk in range(5):
        A(f'ds_read_b128 {vr(AC + 4 * kk)}, v55 offset:{HB + 64 * kk}')
    A('s_mov_b32 exec_hi, 0xff')
    A(f'v_dot2_f32_bf16 v48, v44, v{GA}, 0')
    A('v_dot2_f32_bf16 v49, v44, v44, 0')
    A(f'v_dot2_f32_bf16 v48, v45, v{GA}, v48')
    A('v_dot2_f32_bf16 v49, v45, v45, v49')
    A('s_mov_b32 exec_hi, -1')
    reduce64('v_add_f32', ['v48', 'v49'])
    A('s_waitcnt lgkmcnt(0)')
    for kk in range(5):
        for t in range(2):
            a = ACC + 4 * t
            A(f'v_mfma_f32_16x16x32_bf16 {vr(a)}, {vr(AC + 4 * kk)}, {vr(BW + 8 * kk + 4 * t)}, {vr(a) if kk else 0}')
    A('s_mov_b32 exec_lo, 0\ns_mov_b32 exec_hi, 0x80000000')
    A(f'ds_write_b64 v63, v[48:49] offset:{STB}')
    A('s_mov_b64 exec, -1')
    A(f'v_cndmask_b32 v44, v{ACC}, v{ACC + 4}, {sMk}')
    A(f'ds_write_b32 v60, v44 offset:{ZB}')
    A('s_waitcnt lgkmcnt(0)')
    A('s_barrier')
    A(f's_cmp_lg_u32 {sW}, 0\ns_cbranch_scc1 L_done')
    A(f'ds_read_b128 v[48:51], v63 offset:{STB}')
    A(f'ds_read_b128 v[52:55], v63 offset:{STB + 16}')
    A(f'ds_read_b128 v[44:47], v61 offset:{ZB}')
    A('s_waitcnt lgkmcnt(0)')
    A('v_pk_add_f32 v[48:49], v[48:49], v[50:51]')
    A('v_pk_add_f32 v[52:53], v[52:53], v[54:55]')
    A('v_pk_add_f32 v[44:45], v[44:45], v[46:47]')
    A('v_pk_add_f32 v[48:49], v[48:49], v[52:53]')
    A('v_add_f32 v44, v44, v45')
    ln_scalars('v48', 'v49', 'v50', 'v51', 'v52')
    A('v_fma_f32 v44, -v50, v59, v44')
    A('v_mul_f32 v44, v44, v51')
    rbf('v44', 'v44')
    A('v_add_f32 v44, v44, v58')
    rbf('v44', 'v44')
    A('v_max_f32 v44, 0, v44')
    A('v_mul_f32 v44, v44, v44')
    A(f'v_mov_b32_dpp v45, v44 quad_perm:[1,1,3,3] {DPPF}')
    A('v_cvt_pk_bf16_f32 v44, v44, v45')
    A(f'v_mov_b32_dpp v45, v44 row_shl:2 {DPPF}')
    A(f'v_mov_b32_dpp v46, v44 row_shl:4 {DPPF}')
    A(f'v_mov_b32_dpp v47, v44 row_shl:6 {DPPF}')
    A('s_mov_b32 exec_lo, 0x01010101\ns_mov_b32 exec_hi, 0')
    A(f'buffer_store_dwordx4 v[44:47], v62, {WS}, 0 offen sc1')
    stamp(12)
    end()

    A('L_ffn2:')
    A(f's_lshl_b32 {sB_}, {sIdx}, 5')
    A(f'v_lshrrev_b32 v47, 2, {vL}')
    A(f'v_lshl_add_u32 v62, v47, 1, {sB_}')
    A(f'buffer_load_ushort v56, v62, {X}, 0 offen')
    A(f'buffer_load_ushort v58, v62, {BI}, 0 offen')
    A(f'v_mul_u32_u24 v61, 80, v47')
    A(f'v_and_b32 v48, 3, {vL}')
    A(f'v_lshl_add_u32 v61, v48, 4, v61')
    A(f'v_mul_u32_u24 v53, 2560, v48')
    A(f'v_lshl_add_u32 v53, v62, 1, v53')
    A(f'v_add_u32 v53, {YP_OFF}, v53')
    A(f'v_and_b32 v47, 15, {vL}')
    A(f'v_mul_u32_u24 v60, 80, v47')
    A(f'v_lshrrev_b32 v49, 4, {vL}')
    A(f'v_lshl_add_u32 v60, v49, 2, v60')
    A(f's_lshl_b32 {sC}, {sW}, 4')
    A(f'v_add_u32 v60, {sC}, v60')
    A(f'v_lshrrev_b32 v47, 2, v47')
    A(f'v_mul_u32_u24 v47, 3, v47')
    A(f'v_add_u32 v47, v47, v48')
    A(f'v_lshlrev_b32 v47, 6, v47')
    A(f'v_lshl_add_u32 v47, v49, 4, v47')
    A(f's_mul_i32 {sC}, {sW}, 768\ns_add_u32 {sC}, {sC}, {H1_OFF}')
    A(f'v_add_u32 v54, {sC}, v47')
    for r in range(4):
        A(f'v_mov_b32 v{GA + r}, 0')
    tr_addr(5)
    A('s_waitcnt vmcnt(0)')
    stamp(10)
    for kk in range(12):
        for half in range(2):
            A(f'ds_read_b64_tr_b16 {vr(BW + 4 * kk + 2 * half, 2)}, v46 offset:{WT + 1024 * kk + 128 * half}')
    A(f's_cmp_lg_u32 {sW}, 0\ns_cbranch_scc1 L_noh')
    A('s_movk_i32 s16, 10240')
    hl = [f'buffer_load_dword v48, v53, {WS}, 0 offen sc1', f'buffer_load_dword v49, v53, {WS}, s16 offen sc1']
    for l in hl:
        A(l)
    A('v_lshlrev_b32 v56, 16, v56\nv_lshlrev_b32 v58, 16, v58')
    A('s_waitcnt vmcnt(0)')
    retry_loop('L_h', hl, lambda: sentinel_check(['v48', 'v49'], 'v44'))
    A('v_add_f32 v48, v48, v49')
    A(f'v_add_f32_dpp v48, v48, v48 quad_perm:[1,0,3,2] {DPPF}')
    A(f'v_add_f32_dpp v48, v48, v48 quad_perm:[2,3,0,1] {DPPF}')
    rbf('v48', 'v48')
    A('v_add_f32 v56, v56, v48')
    rbf('v56', 'v56')
    A('L_noh:')
    A('s_mov_b32 exec_lo, 0x77777777\ns_mov_b32 exec_hi, 0x77777777')
    gl = [f'buffer_load_dwordx4 {vr(GA)}, v54, {WS}, 0 offen sc1']
    A(gl[0])
    A('s_waitcnt vmcnt(0) lgkmcnt(0)')
    retry_loop('L_h1', gl, lambda: sentinel_check([f'v{GA + r}' for r in range(4)], 'v44'))
    A('s_mov_b64 exec, -1')
    stamp(11)
    for kk in range(12):
        A(f'v_mfma_f32_16x16x32_bf16 {vr(AC + 4 * kk)}, {vr(GA)}, {vr(BW + 4 * kk)}, 0')
    for g in range(4):
        a = AC + 12 * g
        A(f'v_add_f32 v{a}, v{a}, v{a + 5}')
    for g in range(4):
        a = AC + 12 * g
        A(f'v_add_f32_dpp v44, v{a + 10}, v{a} quad_perm:[0,1,2,3] row_mask:{hex(1 << g)} bank_mask:0xf')
    A(f'ds_write_b32 v60, v44 offset:{ZB}')
    A('s_waitcnt lgkmcnt(0)')
    A('s_barrier')
    A(f's_cmp_lg_u32 {sW}, 0\ns_cbranch_scc1 L_done')
    A(f'ds_read_b128 v[44:47], v61 offset:{ZB}')
    A('s_waitcnt lgkmcnt(0)')
    A('v_pk_add_f32 v[44:45], v[44:45], v[46:47]')
    A('v_add_f32 v44, v44, v45')
    A(f'v_add_f32_dpp v44, v44, v44 quad_perm:[1,0,3,2] {DPPF}')
    A(f'v_add_f32_dpp v44, v44, v44 quad_perm:[2,3,0,1] {DPPF}')
    rbf('v44', 'v44')
    A('v_add_f32 v44, v44, v58')
    rbf('v44', 'v44')
    A('v_add_f32 v44, v44, v56')
    A(f'v_mov_b32_dpp v45, v44 row_shl:4 {DPPF}')
    A('v_cvt_pk_bf16_f32 v44, v44, v45')
    A('s_mov_b32 exec_lo, 0x01010101\ns_mov_b32 exec_hi, 0x01010101')
    A(f'buffer_store_dword v44, v62, {OUT}, 0 offen')
    stamp(12)
    end()
    A('L_exit:')
    A('s_endpgm')

    head = open('cdna_kernels/' + NAME + '.s.ref').read().split('; Override launch')[0]
    head += f'; @launch grid=(256,1,1) block=(512,1,1) lds={LDS_BYTES}\n'
    head += f'.amdgcn_target "amdgcn-amd-amdhsa--gfx950"\n.text\n.globl {KN}\n.p2align 8\n.type {KN},@function\n'
    tail = f'''.section .rodata,"a"
.p2align 6
.amdhsa_kernel {KN}
  .amdhsa_next_free_vgpr 256
  .amdhsa_next_free_sgpr 102
  .amdhsa_accum_offset 256
  .amdhsa_group_segment_fixed_size 0
  .amdhsa_kernarg_size 104
  .amdhsa_user_sgpr_count 2
  .amdhsa_user_sgpr_kernarg_segment_ptr 1
  .amdhsa_system_sgpr_workgroup_id_x 1
  .amdhsa_float_denorm_mode_32 3
.end_amdhsa_kernel
'''
    return head + A.finalize() + tail


if __name__ == '__main__':
    out = sys.argv[1]
    kw = {}
    for a in sys.argv[2:]:
        k, v = a.split('=')
        kw[k] = eval(v) if k not in ('nt', 'wnt') else v
    open(out, 'w').write(gen(**kw))
```

```python
import sys
from asmlib import Asm

NAME = 'sequential_preLN__sliding_block_cached__dense_activation_squared_relu__decode'
KN = NAME + '_kernel'

DEFAULT = dict(
    depth=3,
    red_at=1,
    go_at=6,
    flag_at=13,
    q_at=21,
    ml_lag=3,
    all_at=36,
    boost=1,
    wo_early=8,
    wo_first=6, wo_gap=2,
    w2_early=True,
    drain=2,
    pa=(1, 0), pb=(1, 0), pc=(1, 0), ph=(1, 0),
    dc=0,
    cpf=True,
    inter=2,
    spin=1 << 17, abl='',
    stamps=False,
    probe=None,
    nt='nt', wnt='nt', w1nt='nt', qnt='nt',
)

REC = 1280
QP_O, OP_O, ML_O = 0, 768, 1152
YP_OFF = 256 * REC
OUTP_OFF = YP_OFF + 8 * 20480
F_OFF = OUTP_OFF + 20 * 12288
WS_USED = F_OFF + 4096
STAMP_OFF = 32 << 20

WT = 0
W2B = 20480
QB = 49152
MLB = QB + 384
CNT = MLB + 512
ZB = CNT + 128
CSB = ZB + 1024
REDB = CSB + 256
RSTR = 832
LDS_BYTES = REDB + 16 * RSTR

ROLES = [(0, 20), (20, 32)]
STAMPS = {0: 'start', 1: 'kernargs', 2: 'wq done', 3: 'flag set', 4: 'flags ok', 5: 'q ready', 6: 'scores done',
          7: 'P ready', 8: 'PV done', 9: 'o published', 10: 'weights landed', 11: 'poll ok', 12: 'published',
          13: 'fin poll ok', 14: 'fin stored'}
SPIN = 1 << 17
DPPF = 'row_mask:0xf bank_mask:0xf'
MF = 'v_mfma_f32_16x16x32_bf16'


def vr(a, n=4):
    return f'v[{a}:{a + n - 1}]'


def gen(**kw):
    P = dict(DEFAULT)
    P.update(kw)
    A = Asm()
    D = P['depth']
    NT = P['nt']
    WNT = P['wnt']
    WSTR, GSTR, ISTR = {0: (24576, 3072, 196608), 1: (3072, 24576, 196608), 2: (3072, 196608, 24576)}[P['inter']]
    ABL = P['abl']

    sW, sH, sI, sT, sXX = 's3', 's4', 's5', 's6', 's7'
    sKV, sOff, sRole, sRec, sM, sSpin = 's10', 's11', 's12', 's13', 's14', 's15'
    sA, sB_, sC, sD_ = 's16', 's17', 's18', 's19'
    X, K, V, WQ, WS, DBG, WTS, BI, OUT = ('s[20:23]', 's[24:27]', 's[28:31]', 's[32:35]', 's[36:39]',
                                          's[40:43]', 's[44:47]', 's[48:51]', 's[52:55]')
    W2S = 's[60:63]'
    sWoff, sLog2e, sIdx, sRb = 's66', 's67', 's68', 's69'
    sMk = 's[8:9]'
    vL, vKo, vVo, vQo = 'v0', 'v1', 'v2', 'v3'
    MK = 4
    QOP = 8
    S = 20
    ACC = 28
    T = 44
    vWa, vRedW, vRedR, vWb, vQr = 'v59', 'v60', 'v61', 'v62', 'v63'
    KR, VR = 64, 160

    issued = []

    def load(text, tag):
        A(text)
        issued.append(tag)

    def wait(tag):
        n = len(issued) - 1 - issued.index(tag)
        A(f's_waitcnt vmcnt({n})')

    cnt = [0]

    def stamp(k):
        if P['stamps'] or P['probe'] == k:
            A(f's_memrealtime s[{70 + 2 * k}:{71 + 2 * k}]')

    def end():
        if P['stamps']:
            A('s_mov_b64 exec, -1')
            A('s_waitcnt lgkmcnt(0)')
            A('v_mov_b32 v45, 0')
            for k in range(15):
                A(f'v_writelane_b32 v45, s{70 + 2 * k}, {k}')
            A('s_getreg_b32 s16, hwreg(HW_REG_XCC_ID)')
            A(f's_sub_u32 s17, {P["spin"]}, {sSpin}\ns_lshl_b32 s17, s17, 8\ns_and_b32 s16, s16, 15\ns_or_b32 s16, s16, s17')
            A('v_writelane_b32 v45, s16, 15')
            A(f's_lshl_b32 s16, s2, 3\ns_add_u32 s16, s16, {sW}\ns_lshl_b32 s16, s16, 6\ns_add_u32 s16, s16, {STAMP_OFF}')
            A(f'v_lshlrev_b32 v46, 2, {vL}\nv_add_u32 v46, s16, v46')
            A('s_mov_b64 exec, 0xffff')
            A(f'buffer_store_dword v45, v46, {WS}, 0 offen')
        if P['probe'] is not None:
            cnt[0] += 1
            n = cnt[0]
            sk = f's{70 + 2 * P["probe"]}'
            A('s_waitcnt lgkmcnt(0)')
            A(f's_cmp_lg_u32 {sW}, 0\ns_cbranch_scc1 L_pe{n}')
            A(f's_cmp_eq_u32 {sk}, 0\ns_cbranch_scc1 L_pe{n}')
            A(f'L_pl{n}:')
            A('s_sleep 4\ns_memrealtime s[100:101]\ns_waitcnt lgkmcnt(0)')
            A(f's_sub_u32 s100, s100, {sk}\ns_cmp_lt_u32 s100, 6000\ns_cbranch_scc1 L_pl{n}')
            A(f'L_pe{n}:')
        A('s_endpgm')

    def setexec(lo, hi):
        if lo == hi == 0xffffffff:
            A('s_mov_b64 exec, -1')
        else:
            A(f's_mov_b32 exec_lo, {hex(lo)}\ns_mov_b32 exec_hi, {hex(hi)}')

    def reduce64(op, regs):
        for m in ('quad_perm:[1,0,3,2] ' + DPPF, 'quad_perm:[2,3,0,1] ' + DPPF, 'row_half_mirror ' + DPPF,
                  'row_mirror ' + DPPF, 'row_bcast:15 row_mask:0xa bank_mask:0xf', 'row_bcast:31 row_mask:0xc bank_mask:0xf'):
            for r in regs:
                A(f'{op}_dpp {r}, {r}, {r} {m}')

    def rbf(dst, src):
        A(f'v_cvt_pk_bf16_f32 {dst}, {src}, {src}')
        A(f'v_and_b32 {dst}, 0xffff0000, {dst}')

    def sentinel_check(regs, tmp, val='-1'):
        regs = list(regs)
        if len(regs) == 2:
            A(f'v_max_u32 {tmp}, {regs[0]}, {regs[1]}')
        else:
            A(f'v_max3_u32 {tmp}, {regs[0]}, {regs[1]}, {regs[2]}')
            rest = regs[3:]
            while len(rest) >= 2:
                A(f'v_max3_u32 {tmp}, {tmp}, {rest[0]}, {rest[1]}')
                rest = rest[2:]
            if rest:
                A(f'v_max_u32 {tmp}, {tmp}, {rest[0]}')
        A(f'v_cmp_eq_u32 vcc, {val}, {tmp}')

    def retry_loop(name, loads, check, cfg=(1, 0)):
        pd, sleep = cfg
        A(f'{name}_chk:')
        check()
        A(f's_cbranch_vccz {name}_ok')
        A('s_mov_b64 exec, vcc')
        A(f's_cmp_eq_u32 {sSpin}, 0')
        A(f's_cbranch_scc1 {name}_ok')
        A(f's_sub_u32 {sSpin}, {sSpin}, 1')
        if sleep and pd == 1:
            A(f's_sleep {sleep}')
        for l in loads:
            A(l)
        if sleep and pd > 1:
            A(f's_sleep {sleep}')
        A(f's_waitcnt vmcnt({len(loads) * (pd - 1)})')
        A(f's_branch {name}_chk')
        A(f'{name}_ok:')
        A('s_mov_b64 exec, -1')

    def lds_poll(name, reads, check):
        A(f'{name}_rd:')
        for l in reads:
            A(l)
        A('s_waitcnt lgkmcnt(0)')
        check()
        A(f's_cbranch_vccz {name}_ok')
        A(f's_cmp_eq_u32 {sSpin}, 0')
        A(f's_cbranch_scc1 {name}_ok')
        A(f's_sub_u32 {sSpin}, {sSpin}, 1')
        A('s_sleep 2')
        A(f's_branch {name}_rd')
        A(f'{name}_ok:')

    def ln_scalars(vsum, vsq, vm, vrs, t0):
        A(f'v_mul_f32 {vm}, 0x3acccccd, {vsum}')
        A(f'v_mul_f32 {t0}, 0x3acccccd, {vsq}')
        A(f'v_fma_f32 {t0}, -{vm}, {vm}, {t0}')
        A(f'v_max_f32 {t0}, 0, {t0}')
        rbf(t0, t0)
        A(f'v_add_f32 {t0}, 0x3727c5ac, {t0}')
        rbf(t0, t0)
        A(f'v_sqrt_f32 {t0}, {t0}')
        rbf(vm, vm)
        rbf(t0, t0)
        A(f'v_rcp_f32 {vrs}, {t0}')

    stream = [('K', g, s) for g in range(8) for s in range(3)] + [('V', g, s) for g in range(8) for s in range(3)]
    pos = [0]
    done = [-1]
    sE = 's64'
    sHi = 's65'

    def wload(kind, n):
        if kind == 'We':
            A(f's_add_u32 {sWoff}, {sE}, {20480 * n}')
            A(f's_add_u32 m0, {sHi}, {2048 * n}')
            return f'buffer_load_dwordx4 {vQo}, {WTS}, {sWoff} offen {WNT} lds'
        if kind == 'Wo':
            A(f's_mov_b32 {sWoff}, {10240 * n}')
            A(f's_add_u32 m0, {sD_}, {1024 * n}')
            return f'buffer_load_dwordx4 {vWb if n & 1 else vWa}, {WTS}, {sWoff} offen {WNT} lds'
        if kind == 'W1':
            A(f's_add_u32 {sWoff}, {sE}, {98304 * n}')
            A(f's_add_u32 m0, {sHi}, {1024 * n}')
            return f'buffer_load_dwordx4 {vWa}, {WTS}, {sWoff} offen {P["w1nt"]} lds'
        A(f's_mov_b32 {sWoff}, {1024 * n}')
        A(f's_add_u32 m0, {sD_}, {W2B + 1024 * n}')
        return f'buffer_load_dwordx4 {vWb}, {W2S}, {sWoff} offen {WNT} lds'

    early = {P['wo_first'] + P['wo_gap'] * j: j for j in range(P['wo_early'] // 2)}
    assert not early or (max(early) < 44 and min(early) >= D)

    def issue_next():
        if pos[0] >= len(stream):
            return False
        kind, g, s = stream[pos[0]]
        if kind[0] == 'W':
            pos[0] += 1
            load(wload(kind, g), (kind, g, s))
            return True
        if s == 0:
            A(f's_add_u32 {sOff}, {sKV}, {GSTR * g}')
        base, vo, srd = (KR, vKo, K) if kind == 'K' else (VR, vVo, V)
        load(f'buffer_load_dwordx4 {vr(base + 12 * g + 4 * s)}, {vo}, {srd}, {sOff} offen offset:{128 * s} {NT}', (kind, g, s))
        if pos[0] in early:
            cnt[0] += 1
            A(f's_cmp_lg_u32 {sRole}, 0\ns_cbranch_scc1 L_ew{cnt[0]}')
            A(wload('We', early[pos[0]]))
            A(f'L_ew{cnt[0]}:')
        pos[0] += 1
        return True

    def fill(extra=0):
        while pos[0] < len(stream) and pos[0] - (done[0] + 1) < D + extra:
            issue_next()

    def step():
        done[0] += 1
        wait(stream[done[0]])
        if pos[0] >= 48:
            for _ in range(P['drain']):
                issue_next()
        else:
            fill()

    def step_until(idx):
        while done[0] < idx:
            step()

    def set_flag(name, leader):
        A(f's_cmp_lg_u32 {sW}, 0')
        A(f's_cbranch_scc1 {name}')
        A('s_waitcnt vmcnt(0)')
        if leader:
            A('s_cmp_lg_u32 s2, 0')
            A(f's_cbranch_scc1 {name}')
            A('s_mov_b64 exec, 1')
            A(f'buffer_store_dword v16, {vL}, {DBG}, 0 offen sc1')
            A('s_mov_b64 exec, -1')
        A(f'{name}:')

    def common_setup():
        A('s_mov_b32 s26, 402653184\ns_mov_b32 s27, 0x20000')
        A('s_mov_b32 s30, 402653184\ns_mov_b32 s31, 0x20000')
        A('s_movk_i32 s42, 256\ns_mov_b32 s43, 0x20000')
        A('s_movk_i32 s54, 1280\ns_mov_b32 s55, 0x20000')
        A('s_mov_b32 s51, 0x20000')
        A(f's_mov_b32 {sSpin}, {P["spin"]}')
        A(f's_mov_b32 {sLog2e}, 0x3fb8aa3b')
        A(f's_movk_i32 {sA}, 384')
        A(f'v_mad_u32_u24 {vVo}, v44, {sA}, v46')
        A(f'v_bfe_u32 v47, {vL}, 1, 3')
        A(f'v_lshrrev_b32 v48, 4, {vL}')
        A(f'v_lshl_add_u32 v48, v48, 1, v49')
        A(f'v_lshlrev_b32 {vQr}, 4, v48')
        A(f'v_mad_u32_u24 {vKo}, v47, {sA}, {vQr}')
        A(f's_mul_i32 {sKV}, {sH}, 12582912')
        A(f's_mul_i32 {sA}, {sI}, {ISTR}')
        A(f's_add_u32 {sKV}, {sKV}, {sA}')
        A(f's_mul_i32 {sA}, {sW}, {WSTR}')
        A(f's_add_u32 {sKV}, {sKV}, {sA}')
        A(f's_add_u32 {sKV}, {sKV}, {28672 * 384}')
        A(f'v_lshlrev_b32 v47, 4, v49')
        A(f'v_mov_b32 v48, 0xffff')
        A(f'v_lshlrev_b32 v47, v47, v48')
        A(f'v_lshrrev_b32 v48, 1, v45')
        for r in range(4):
            A(f'v_cmp_eq_u32 vcc, {r}, v48')
            A(f'v_cndmask_b32 v{MK + r}, 0, v47, vcc')
        A(f'v_lshrrev_b32 v47, 5, {vL}')
        A(f's_lshl_b32 {sA}, {sW}, 1')
        A(f'v_add_u32 v47, {sA}, v47')
        A(f'v_mul_u32_u24 v47, {RSTR}, v47')
        A(f'v_bfe_u32 v48, {vL}, 4, 1')
        A(f'v_lshl_add_u32 v48, v45, 1, v48')
        A(f'v_lshl_add_u32 {vRedW}, v48, 4, v47')
        A(f'v_add_u32 {vRedW}, {REDB}, {vRedW}')
        A(f'v_and_b32 v47, 3, {vL}')
        A(f'v_mul_u32_u24 v47, {RSTR}, v47')
        A(f'v_lshrrev_b32 v48, 2, {vL}')
        A(f'v_lshl_add_u32 v47, v48, 4, v47')
        A(f's_and_b32 {sA}, {sW}, 3\ns_lshl_b32 {sA}, {sA}, 8\ns_add_u32 {sA}, {sA}, {REDB}')
        A(f'v_add_u32 {vRedR}, {sA}, v47')
        A(f'ds_write_b128 v52, v[16:19] offset:{QB}')
        A('s_waitcnt lgkmcnt(0)')
        A('s_barrier')

    A(f'{KN}:')
    if P['stamps'] or P['probe'] is not None:
        for k in range(1, 15):
            A(f's_mov_b32 s{70 + 2 * k}, 0')
    stamp(0)
    A('s_load_dwordx2 s[32:33], s[0:1], 24')
    A('s_load_dwordx2 s[36:37], s[0:1], 96')
    A('s_load_dwordx2 s[20:21], s[0:1], 0')
    A('s_load_dwordx2 s[24:25], s[0:1], 8')
    A('s_load_dwordx2 s[28:29], s[0:1], 16')
    A('s_load_dwordx2 s[40:41], s[0:1], 88')
    A('s_load_dwordx2 s[52:53], s[0:1], 80')
    A('s_cmp_ge_u32 s2, 256')
    A('s_cbranch_scc1 L_exit')
    A(f'v_lshrrev_b32 v44, 6, v0')
    A(f'v_and_b32 {vL}, 63, v0')
    A(f'v_readfirstlane_b32 {sW}, v44')
    A(f's_lshr_b32 {sT}, s2, 3')
    A(f's_and_b32 {sXX}, s2, 7')
    A(f's_and_b32 {sH}, {sT}, 3')
    A(f's_lshl2_add_u32 {sH}, {sXX}, {sH}')
    A(f's_lshr_b32 {sI}, s2, 5')
    A(f's_lshl3_add_u32 {sRec}, {sH}, {sI}')
    A(f's_mul_i32 {sRec}, {sRec}, {REC}')
    A('s_movk_i32 s22, 1280\ns_mov_b32 s23, 0x20000')
    A(f's_mov_b32 s38, {(64 << 20) if P["stamps"] else WS_USED}\ns_mov_b32 s39, 0x20000')
    A('s_mov_b32 s47, 0x20000')
    A(f'v_lshrrev_b32 v44, 3, {vL}')
    A(f'v_and_b32 v45, 7, {vL}')
    A(f'v_lshlrev_b32 v46, 4, v45')
    A(f'v_and_b32 v49, 1, {vL}')
    A(f'v_lshlrev_b32 v52, 4, {vL}')
    A(f'v_lshlrev_b32 v53, 2, {vL}')
    A('v_mov_b32 v16, -1\nv_mov_b32 v17, -1\nv_mov_b32 v18, -1\nv_mov_b32 v19, -1')
    A(f's_and_b32 {sD_}, {sW}, 3')
    A(f's_lshr_b32 {sHi}, {sW}, 2')
    if P['cpf']:
        A(f's_cmp_lg_u32 {sW}, 1')
        A('s_cbranch_scc1 L_nocpf')
        A('s_getpc_b64 s[56:57]')
        A('L_pc:')
        A(f'v_lshlrev_b32 v47, 7, {vL}')
        A('global_load_dword v15, v47, s[56:57]')
        A('v_add_u32 v47, 8192, v47')
        A('v_min_u32 v47, L_exit-L_pc, v47')
        A('global_load_dword v15, v47, s[56:57]')
        A('L_nocpf:')
    A(f's_cmp_ge_u32 {sT}, 20')
    A('s_cbranch_scc1 L_startffn')

    A('s_load_dwordx2 s[44:45], s[0:1], 32')
    A('s_load_dwordx2 s[48:49], s[0:1], 72')
    A(f's_mov_b32 {sRole}, 0')
    A(f's_mov_b32 s34, {0 if "q" in ABL else 7864320}\ns_mov_b32 s35, 0x20000')
    A(f's_cmp_ge_u32 {sT}, 10\ns_cselect_b32 {sRb}, 1, 0\ns_cselect_b32 {sM}, 10, 0')
    A(f's_lshl1_add_u32 {sRb}, {sXX}, {sRb}')
    A(f's_sub_u32 {sIdx}, {sT}, {sM}')
    A(f's_movk_i32 {sA}, 12288')
    A(f'v_mad_u32_u24 {vQo}, v44, {sA}, v46')
    A(f's_lshl3_add_u32 {sB_}, {sI}, {sW}\ns_lshl_b32 {sB_}, {sB_}, 4')
    A(f'v_add_lshl_u32 v50, v44, {sB_}, 1')
    A(f's_mul_i32 {sB_}, {sB_}, 12288\ns_mul_i32 {sM}, {sH}, 384\ns_add_u32 {sB_}, {sB_}, {sM}')
    A(f's_add_u32 {sC}, {sB_}, {8 * 12288}')
    A(f's_movk_i32 {sA}, 20480')
    A(f'v_mad_u32_u24 v47, v44, {sA}, v46')
    A(f's_mul_i32 {sA}, {sRb}, 1280\ns_lshl_b32 {sM}, {sIdx}, 7\ns_add_u32 {sA}, {sA}, {sM}\ns_add_u32 {sA}, {sA}, {YP_OFF}')
    A(f's_cmp_lg_u32 {sW}, 0')
    A('s_waitcnt lgkmcnt(0)')
    stamp(1)
    A('s_branch L_noclr0' if 'c' in ABL else 's_cbranch_scc1 L_noclr0')
    A('s_cmp_lg_u32 s2, 0')
    A('s_cbranch_scc1 L_nolead')
    A(f's_mov_b32 {sM}, {F_OFF}')
    for n in range(4):
        A(f'buffer_store_dwordx4 v[16:19], v52, {WS}, {sM} offen offset:{1024 * n} sc1')
    A('L_nolead:')
    A(f'buffer_store_dwordx4 v[16:19], v52, {WS}, {sRec} offen sc1')
    A(f'buffer_store_dwordx4 v[16:19], v47, {WS}, {sA} offen sc1')
    A('s_mov_b64 exec, 0x1ff')
    A(f'buffer_store_dwordx4 v[16:19], v52, {WS}, {sRec} offen offset:1024 sc1')
    A('s_mov_b64 exec, -1')
    A('L_noclr0:')
    XA, XB, XE0, XE1 = 8, 12, 13, 14
    wql = [f'buffer_load_dwordx4 {vr(VR + 4 * n)}, {vQo}, {WQ}, {sC if n >= 3 else sB_} offen offset:{128 * (n % 3)} {P["qnt"]}' for n in range(6)]
    n0 = min(D, 6)
    for n in range(n0):
        load(wql[n], f'wq{n}')
    load(f'buffer_load_dwordx4 {vr(XA)}, v52, {X}, 0 offen', 'xa')
    load(f'buffer_load_dword v{XB}, v53, {X}, 0 offen offset:1024', 'xb')
    load(f'buffer_load_ushort v{XE0}, v50, {X}, 0 offen', 'xe0')
    load(f'buffer_load_ushort v{XE1}, v50, {X}, 0 offen offset:16', 'xe1')
    common_setup()
    A(f's_mov_b32 s46, {0 if "w" in ABL else 7864320}\ns_movk_i32 s50, 1280')
    A(f's_lshl2_add_u32 {sA}, {sRb}, {sD_}\ns_mul_i32 {sA}, {sA}, {96 * 1280}\ns_lshl_b32 {sM}, {sIdx}, 7\ns_add_u32 {sA}, {sA}, {sM}')
    A(f'v_mul_u32_u24 v47, 1280, v44')
    A(f'v_and_b32 v48, 2, v44')
    A(f'v_xor_b32 v48, v48, v45')
    A(f'v_lshl_add_u32 v47, v48, 4, v47')
    A(f'v_add_u32 {vWa}, {sA}, v47')
    A(f'v_xor_b32 {vWb}, 64, {vWa}')
    A(f's_mul_i32 {sD_}, {sD_}, 12288')
    A(f's_mul_i32 {sE}, {sHi}, 10240')
    A(f's_lshl_b32 {sM}, {sHi}, 6')
    A(f's_lshl_b32 {sHi}, {sHi}, 10\ns_add_u32 {sHi}, {sHi}, {sD_}')
    set_flag('L_flag0', True)
    nxt = n0
    for n in range(n0):
        wait(f'wq{n}')
        if nxt < 6:
            load(wql[nxt], f'wq{nxt}')
            nxt += 1
        else:
            issue_next()
    assert nxt == 6
    A(f'v_xor_b32 {vQo}, {sM}, {vWa}')
    wait('xe1')
    A(f's_mov_b32 {sA}, 0x3f803f80')
    A(f'v_dot2_f32_bf16 v47, v{XA}, {sA}, 0')
    A(f'v_dot2_f32_bf16 v48, v{XA}, v{XA}, 0')
    for r in range(1, 5):
        A(f'v_dot2_f32_bf16 v47, v{XA + r}, {sA}, v47')
        A(f'v_dot2_f32_bf16 v48, v{XA + r}, v{XA + r}, v48')
    reduce64('v_add_f32', ['v47', 'v48'])
    A(f'v_readlane_b32 {sA}, v47, 63')
    A(f'v_readlane_b32 {sB_}, v48, 63')
    A(f'v_mov_b32 v47, {sA}')
    A(f'v_mov_b32 v48, {sB_}')
    ln_scalars('v47', 'v48', 'v50', 'v51', 'v54')
    for n, xe in enumerate((XE0, XE1)):
        A(f'v_lshlrev_b32 v{xe}, 16, v{xe}')
        A(f'v_sub_f32 v{xe}, v{xe}, v50')
        rbf(f'v{xe}', f'v{xe}')
        A(f'v_mul_f32 v{xe}, v{xe}, v51')
        A(f'v_cvt_pk_bf16_f32 v{xe}, v{xe}, v{xe}')
        for r in range(4):
            A(f'v_and_b32 v{S + 4 * n + r}, v{xe}, v{MK + r}')
    for n in range(6):
        if n >= n0:
            wait(f'wq{n}')
            issue_next()
        a = ACC + 4 * (n % 3)
        A(f'{MF} {vr(a)}, {vr(S + 4 * (n // 3))}, {vr(VR + 4 * n)}, {vr(a) if n >= 3 else 0}')
    fill()
    stamp(2)
    setexec(0x00ff00ff, 0xff00ff00)
    for s in range(3):
        A(f'ds_write_b128 {vRedW}, {vr(ACC + 4 * s)} offset:{256 * s}')
    A(f's_lshl_b32 {sA}, {sW}, 2')
    A(f'v_mov_b32 v47, {sA}')
    A('s_mov_b64 exec, 1')
    A('s_waitcnt lgkmcnt(0)')
    A(f'ds_write_b32 v47, v47 offset:{CNT}')
    A('s_mov_b64 exec, -1')
    step_until(P['red_at'])
    A(f's_cmp_gt_u32 {sW}, 2')
    A('s_cbranch_scc1 L_kstream')
    A(f'v_lshlrev_b32 v47, 2, v45')
    lds_poll('L_cnt', [f'ds_read_b32 v48, v47 offset:{CNT}'], lambda: A('v_cmp_eq_u32 vcc, -1, v48'))
    for n in range(4):
        A(f'ds_read_b128 {vr(S + 4 * n)}, {vRedR} offset:{4 * n * RSTR}')
    A(f's_lshl_b32 {sA}, {sW}, 8\ns_add_u32 {sA}, {sA}, {sRec}')
    A('s_waitcnt lgkmcnt(0)')
    for n in range(1, 4):
        for h in (0, 2):
            A(f'v_pk_add_f32 {vr(S + h, 2)}, {vr(S + h, 2)}, {vr(S + 4 * n + h, 2)}')
    for m in ('quad_perm:[1,0,3,2]', 'quad_perm:[2,3,0,1]'):
        for r in range(4):
            A(f'v_add_f32_dpp v{S + r}, v{S + r}, v{S + r} {m} {DPPF}')
    setexec(0x11111111, 0x11111111)
    A(f'buffer_store_dwordx4 {vr(S)}, v53, {WS}, {sA} offen offset:{QP_O} sc1')
    A('s_mov_b64 exec, -1')
    A('s_branch L_kstream')
    state0 = (pos[0], done[0])

    A('L_startffn:')
    issued[:], pos[0], done[0] = [], 0, -1
    A('s_load_dwordx2 s[44:45], s[0:1], 48')
    A('s_load_dwordx2 s[48:49], s[0:1], 56')
    A('s_load_dwordx2 s[60:61], s[0:1], 64')
    A(f's_mov_b32 {sRole}, 1')
    A(f's_mov_b32 {sRb}, 0')
    A(f's_mov_b32 s46, {0 if "1" in ABL else 1966080}\ns_movk_i32 s50, 3072')
    A(f's_mov_b32 s62, {0 if "w" in ABL else 1966080}\ns_mov_b32 s63, 0x20000')
    A(f's_mul_i32 {sIdx}, {sXX}, 12\ns_add_u32 {sIdx}, {sIdx}, {sT}\ns_sub_u32 {sIdx}, {sIdx}, 20')
    A(f's_mul_i32 {sA}, {sD_}, {160 * 3072}\ns_lshl_b32 {sM}, {sIdx}, 5\ns_add_u32 {sA}, {sA}, {sM}')
    A(f'v_lshrrev_b32 v47, 1, {vL}')
    A(f'v_mul_u32_u24 v47, 3072, v47')
    A(f'v_lshl_add_u32 v47, v49, 4, v47')
    A(f'v_add_u32 {vWa}, {sA}, v47')
    A(f's_mul_i32 {sD_}, {sD_}, 5120')
    A(f's_mul_i32 {sA}, {sIdx}, 20480\ns_add_u32 {sA}, {sA}, {sD_}')
    A(f'v_add_u32 {vWb}, {sA}, v52')
    A(f'v_mov_b32 {vQo}, 0')
    A(f's_mul_i32 {sE}, {sHi}, {3 * 98304}')
    A(f's_mul_i32 {sHi}, {sHi}, 3072\ns_add_u32 {sHi}, {sHi}, {sD_}')
    A(f's_movk_i32 {sA}, 12288')
    A(f'v_mad_u32_u24 v47, v44, {sA}, v46')
    A(f's_lshl_b32 {sA}, {sIdx}, 7\ns_add_u32 {sA}, {sA}, {OUTP_OFF}')
    A(f's_add_u32 {sB_}, {sA}, {8 * 12288}\ns_add_u32 {sC}, {sA}, {16 * 12288}')
    A(f's_cmp_lg_u32 {sW}, 0')
    A('s_waitcnt lgkmcnt(0)')
    stamp(1)
    A('s_branch L_noclr1' if 'c' in ABL else 's_cbranch_scc1 L_noclr1')
    A(f'buffer_store_dwordx4 v[16:19], v47, {WS}, {sA} offen sc1')
    A(f'buffer_store_dwordx4 v[16:19], v47, {WS}, {sB_} offen sc1')
    A('s_mov_b32 exec_hi, 0')
    A(f'buffer_store_dwordx4 v[16:19], v47, {WS}, {sC} offen sc1')
    A('s_mov_b32 exec_lo, 0x01ffffff')
    A(f'buffer_store_dwordx4 v[16:19], v52, {WS}, {sRec} offen offset:{OP_O} sc1')
    A('s_mov_b64 exec, -1')
    A('L_noclr1:')
    A(wload('W1', 0))
    common_setup()
    set_flag('L_flag1', False)
    A(wload('W1', 1))
    A('s_waitcnt vmcnt(1)')
    A(f's_cmp_ge_u32 {sW}, 4')
    A('s_cbranch_scc1 L_ffnhi')
    A(wload('W1', 2))
    A('s_waitcnt vmcnt(1)')
    if P['w2_early']:
        A('s_branch L_ffnlo')
    A('L_ffnhi:')
    if P['w2_early']:
        for n in range(5):
            A(wload('W2', n))
        A('s_waitcnt vmcnt(4)')
        A('L_ffnlo:')
    fill()
    step_until(P['red_at'])
    assert state0 == (pos[0], done[0])

    A('L_kstream:')
    qat = P['flag_at'] + D - 1
    assert P['red_at'] <= P['go_at'] - D - 1 and P['go_at'] <= P['flag_at'] - D and qat <= P['q_at']
    save = (list(issued), pos[0], done[0])
    A(f's_cmp_eq_u32 {sW}, 0')
    A('s_cbranch_scc1 L_comm')
    step_until(qat)
    state_main = (pos[0], done[0])
    A('s_branch L_qjoin')

    A('L_comm:')
    issued[:], pos[0], done[0] = save
    step_until(P['go_at'] - D - 1)
    A('v_mov_b32 v43, 0')
    go = f'buffer_load_dword v44, v43, {DBG}, 0 offen sc1'
    load(go, 'go')
    A(f's_lshl_b32 {sB_}, {sH}, 7\ns_add_u32 {sB_}, {sB_}, {F_OFF}\ns_lshl2_add_u32 {sA}, {sI}, {sB_}')
    step_until(P['go_at'] - 1)
    wait('go')
    retry_loop('L_go', [go], lambda: A(f'v_cmp_eq_u32 vcc, 0, v44'), (1, 4))
    A('s_mov_b64 exec, 1')
    if 'f' not in ABL:
        A(f'buffer_store_dword v43, v43, {WS}, {sA} offen sc1')
    A('s_mov_b64 exec, -1')
    stamp(3)
    step_until(P['flag_at'] - D - 1)
    fl = f'buffer_load_dword v44, v53, {WS}, {sB_} offen sc1'
    A('s_mov_b64 exec, 31')
    load(fl, 'flag')
    A('s_mov_b64 exec, -1')
    step_until(P['flag_at'] - 1)
    wait('flag')
    A('s_mov_b64 exec, 31')
    retry_loop('L_flag', [fl], lambda: A('v_cmp_eq_u32 vcc, -1, v44'), (1, 4))
    stamp(4)
    GQ = 24
    A(f's_mul_i32 {sA}, {sH}, {8 * REC}\ns_add_u32 {sB_}, {sA}, {4 * REC}')
    A('s_mov_b32 exec_hi, 0xffff')
    ql = [f'buffer_load_dwordx4 {vr(GQ + 4 * p)}, v52, {WS}, {sA if p < 4 else sB_} offen offset:{QP_O + REC * (p & 3)} sc1' for p in range(5)]
    for p in range(5):
        load(ql[p], f'qg{p}')
    A('s_mov_b32 exec_hi, -1')
    step_until(qat)
    assert state_main == (pos[0], done[0])
    wait('qg4')
    A('s_mov_b32 exec_hi, 0xffff')
    retry_loop('L_qg', ql, lambda: sentinel_check([f'v{GQ + r}' for r in range(20)], 'v44'))
    for n in range(1, 5):
        for h in (0, 2):
            A(f'v_pk_add_f32 {vr(GQ + h, 2)}, {vr(GQ + h, 2)}, {vr(GQ + 4 * n + h, 2)}')
    A(f'v_cvt_pk_bf16_f32 v{S}, v{GQ}, v{GQ + 1}')
    A(f'v_cvt_pk_bf16_f32 v{S + 1}, v{GQ + 2}, v{GQ + 3}')
    A(f'v_lshlrev_b32 v46, 3, {vL}')
    A('s_mov_b32 exec_hi, 0xffff')
    A(f'ds_write_b64 v46, {vr(S, 2)} offset:{QB}')
    A('s_mov_b32 exec_hi, -1')
    A('L_qjoin:')
    step_until(P['q_at'])
    fill(P['boost'])
    lds_poll('L_q', [f'ds_read_b128 {vr(QOP + 4 * s)}, {vQr} offset:{QB + 128 * s}' for s in range(3)],
             lambda: sentinel_check([f'v{QOP + r}' for r in range(12)], 'v44'))
    A('s_mov_b32 s8, 0xff00ff00\ns_mov_b32 s9, 0xff00ff00')
    A(f's_mov_b32 {sA}, 0xaaaaaaaa\ns_mov_b32 {sB_}, 0xaaaaaaaa')
    stamp(5)

    def qk_mfma(g):
        t = T + 4 * (g & 1)
        for s in range(3):
            A(f'{MF} {vr(t)}, {vr(KR + 12 * g + 4 * s)}, {vr(QOP + 4 * s)}, {vr(t) if s else 0}')

    def qk_post(g):
        t = T + 4 * (g & 1)
        A(f'v_cndmask_b32 v{t}, v{t}, v{t + 2}, {sMk}')
        A(f'v_cndmask_b32 v{t + 1}, v{t + 1}, v{t + 3}, {sMk}')
        A(f'v_cndmask_b32 v{t}, v{t}, v{t + 1}, s[16:17]')
        A(f'v_add_f32_dpp v{t}, v{t}, v{t} quad_perm:[1,0,3,2] {DPPF}')
        rbf(f'v{t}', f'v{t}')
        A(f'v_mul_f32 v{t}, 0x3d93cd3a, v{t}')
        rbf(f'v{S + g}', f'v{t}')

    for g in range(8):
        step_until(3 * g + 2)
        qk_mfma(g)
        if g:
            qk_post(g - 1)
    qk_post(7)
    stamp(6)
    A(f'v_max3_f32 v44, v{S}, v{S + 1}, v{S + 2}')
    A(f'v_max3_f32 v44, v44, v{S + 3}, v{S + 4}')
    A(f'v_max3_f32 v44, v44, v{S + 5}, v{S + 6}')
    A(f'v_max_f32 v44, v44, v{S + 7}')
    A(f'v_mul_f32 v44, {sLog2e}, v44')
    for g in range(8):
        A(f'v_fma_f32 v{S + g}, v{S + g}, {sLog2e}, -v44')
    for g in range(8):
        A(f'v_exp_f32 v{S + g}, v{S + g}')
    A(f'v_and_b32 v46, 0x38, {vL}')
    A(f's_lshl_b32 {sA}, {sW}, 6')
    A(f'v_add_u32 v46, {sA}, v46')
    A(f'v_add_f32 v45, v{S}, v{S + 1}')
    for g in range(2, 8):
        A(f'v_add_f32 v45, v45, v{S + g}')
    A(f'ds_write_b64 v46, v[44:45] offset:{MLB}')
    A(f'v_lshlrev_b32 v46, 3, {vL}')
    step_until(done[0] + P['ml_lag'])
    fill(P['boost'])
    lds_poll('L_mlb', [f'ds_read_b64 v[48:49], v46 offset:{MLB}'], lambda: sentinel_check(['v48', 'v49'], 'v50'))
    A('v_mov_b32 v50, v48')
    reduce64('v_max_f32', ['v50'])
    A(f'v_readlane_b32 {sM}, v50, 63')
    A(f'v_subrev_f32 v44, {sM}, v44')
    A('v_exp_f32 v44, v44')
    A(f's_cmp_lg_u32 {sW}, 6')
    A('s_cbranch_scc1 L_nomlpub')
    A(f'v_subrev_f32 v48, {sM}, v48')
    A('v_exp_f32 v48, v48')
    A('v_mul_f32 v51, v48, v49')
    reduce64('v_add_f32', ['v51'])
    A(f'v_mov_b32 v46, {sRec}')
    setexec(0, 0x80000000)
    A(f'buffer_store_dwordx2 v[50:51], v46, {WS}, 0 offen offset:{ML_O} sc1')
    A('s_mov_b64 exec, -1')
    A('L_nomlpub:')
    for g in range(8):
        A(f'v_mul_f32 v{S + g}, v{S + g}, v44')
        A(f'v_cvt_pk_bf16_f32 v{S + g}, v{S + g}, v{S + g}')
        for r in range(4):
            A(f'v_and_b32 v{KR + 4 * g + r}, v{S + g}, v{MK + r}')
    stamp(7)

    def pv(idx):
        step_until(idx)
        _, g, s = stream[idx]
        A(f'{MF} {vr(ACC + 4 * s)}, {vr(KR + 4 * g)}, {vr(VR + 12 * g + 4 * s)}, {vr(ACC + 4 * s) if g else 0}')

    idx = 24
    al = f'buffer_load_dwordx4 v[44:47], v48, {WS}, 0 offen sc1'
    chk_at = None
    while pos[0] < 48:
        pv(idx)
        idx += 1
        if chk_at is None and pos[0] >= P['all_at']:
            chk_at = pos[0]
            A(f's_cmp_lg_u32 {sW}, 0\ns_cbranch_scc1 L_noall')
            A(f'v_lshrrev_b32 v48, 1, {vL}')
            A(f'v_lshlrev_b32 v48, 7, v48')
            A(f'v_and_b32 v49, 1, {vL}')
            A(f'v_lshl_add_u32 v48, v49, 4, v48')
            A(f'v_add_u32 v48, {F_OFF}, v48')
            A(al)
            A('L_noall:')
        elif chk_at is not None and chk_at >= 0 and done[0] >= chk_at:
            chk_at = -1
            A(f's_cmp_lg_u32 {sW}, 0\ns_cbranch_scc1 L_noall2')
            retry_loop('L_all', [al], lambda: sentinel_check(['v44', 'v45', 'v46', 'v47'], 'v49'), (1, 4))
            A('L_noall2:')
    assert chk_at == -1

    def finish_pv():
        for k in range(idx, 48):
            pv(k)
        stamp(8)
        setexec(0x00ff00ff, 0xff00ff00)
        for s in range(3):
            A(f'ds_write_b128 {vRedW}, {vr(ACC + 4 * s)} offset:{256 * s}')
        A('s_mov_b64 exec, -1')
        A('s_waitcnt lgkmcnt(0)')
        A('s_barrier')

    def rest_weights():
        while issue_next():
            pass

    save = (list(issued), pos[0], done[0])
    A(f's_cmp_lt_u32 {sW}, 4')
    A('s_cbranch_scc1 L_lowwaves')
    A(f's_sub_u32 {sA}, {sW}, 4\ns_lshl_b32 {sA}, {sA}, 7\ns_add_u32 {sA}, {sA}, {sRec}')
    A(f'v_lshlrev_b32 v47, 1, {vL}')
    A('s_setprio 2')
    finish_pv()
    A(f's_cmp_eq_u32 {sW}, 7')
    A('s_cbranch_scc1 L_done')
    for n in range(4):
        A(f'ds_read_b128 {vr(S + 4 * n)}, {vRedR} offset:{4 * n * RSTR}')
    A('s_waitcnt lgkmcnt(2)') if not P['stamps'] and P['probe'] is None else A('s_waitcnt lgkmcnt(0)')
    for h in (0, 2):
        A(f'v_pk_add_f32 {vr(S + h, 2)}, {vr(S + h, 2)}, {vr(S + 4 + h, 2)}')
    A('s_waitcnt lgkmcnt(0)')
    for h in (0, 2):
        A(f'v_pk_add_f32 {vr(S + 8 + h, 2)}, {vr(S + 8 + h, 2)}, {vr(S + 12 + h, 2)}')
    for h in (0, 2):
        A(f'v_pk_add_f32 {vr(S + h, 2)}, {vr(S + h, 2)}, {vr(S + 8 + h, 2)}')
    for m in ('quad_perm:[1,0,3,2]', 'quad_perm:[2,3,0,1]'):
        for r in range(4):
            A(f'v_add_f32_dpp v{S + r}, v{S + r}, v{S + r} {m} {DPPF}')
    A(f'v_cvt_pk_bf16_f32 v{S}, v{S}, v{S + 1}')
    A(f'v_cvt_pk_bf16_f32 v{S + 1}, v{S + 2}, v{S + 3}')
    A(f'v_mov_b32_dpp v{S + 2}, v{S} row_shl:4 {DPPF}')
    A(f'v_mov_b32_dpp v{S + 3}, v{S + 1} row_shl:4 {DPPF}')
    setexec(0x01010101, 0x01010101)
    A(f'buffer_store_dwordx4 {vr(S)}, v47, {WS}, {sA} offen offset:{OP_O} sc1')
    stamp(9)
    A('L_done:')
    end()

    A('L_lowwaves:')
    A(f's_cmp_eq_u32 {sRole}, 1')
    A('s_cbranch_scc1 L_ffn')

    BW, GA, AC = 96, 144, 160
    issued[:], pos[0], done[0] = save
    del stream[48:]
    stream.extend(('Wo', n, 0) for n in range(P['wo_early'], 12))
    finish_pv()
    A(f's_lshr_b32 {sA}, {sW}, 1\ns_lshl1_add_u32 {sA}, {sRb}, {sA}')
    A(f's_mul_i32 {sA}, {sA}, {8 * REC}')
    A(f'v_bfe_u32 v47, {vL}, 4, 1')
    A(f'v_and_b32 v48, 3, {vL}')
    A(f'v_lshl_add_u32 v49, v47, 2, v48')
    A(f'v_xor_b32 v50, 4, v49')
    A(f'v_mul_u32_u24 v52, {REC}, v49')
    A(f'v_mul_u32_u24 v53, {REC}, v50')
    A(f'v_and_b32 v49, 7, {vL}')
    A(f'v_mul_u32_u24 v54, {REC}, v49')
    A(f'v_lshrrev_b32 v50, 4, {vL}')
    A(f'v_lshl_add_u32 v54, v50, 4, v54')
    A(f's_and_b32 {sB_}, {sW}, 1\ns_mul_i32 {sB_}, {sB_}, 192')
    A(f'v_add_u32 v54, {sB_}, v54')
    A(f'v_bfe_u32 v51, {vL}, 2, 2')
    A(f'v_lshl_add_u32 v50, v50, 3, v51')
    A(f'v_lshlrev_b32 v50, 7, v50')
    A(f'v_lshl_add_u32 v50, v48, 3, v50')
    A(f'v_lshrrev_b32 v51, 1, v51')
    A(f'v_lshl_add_u32 v51, v47, 1, v51')
    A(f'v_lshl_add_u32 v50, v51, 5, v50')
    A(f'v_add_u32 v40, {sD_}, v50')
    for t in range(1, 4):
        A(f'v_xor_b32 v{40 + t}, {32 * t}, v40')
    for r in range(12):
        A(f'v_mov_b32 v{GA + r}, 0')
    A(f'v_lshlrev_b32 v61, 4, {vL}')
    A(f's_lshl_b32 {sB_}, {sW}, 2')
    A(f'v_add_u32 v60, {sB_}, v61')
    rest_weights()
    A(f's_mul_i32 {sB_}, {sW}, 40960\ns_mul_i32 {sC}, {sRb}, 1280\ns_add_u32 {sB_}, {sB_}, {sC}')
    A(f's_lshl_b32 {sC}, {sIdx}, 7\ns_add_u32 {sB_}, {sB_}, {sC}\ns_add_u32 {sB_}, {sB_}, {YP_OFF}')
    A(f's_add_u32 {sC}, {sB_}, 20480')
    A(f'v_lshlrev_b32 v62, 1, {vL}')
    ml = [f'buffer_load_dwordx2 v[56:57], v52, {WS}, {sA} offen offset:{ML_O} sc1',
          f'buffer_load_dwordx2 v[58:59], v53, {WS}, {sA} offen offset:{ML_O} sc1']
    for l in ml:
        A(l)
    ol = [f'buffer_load_dwordx4 {vr(GA + 4 * n)}, v54, {WS}, {sA} offen offset:{OP_O + 64 * n} sc1' for n in range(3)]
    setexec(0x00ff00ff, 0x00ff00ff)
    for l in ol:
        A(l)
    A('s_mov_b64 exec, -1')
    A('s_waitcnt vmcnt(5)')
    stamp(10)
    for t in range(4):
        for kk in range(3):
            for half in range(2):
                A(f'ds_read_b64_tr_b16 {vr(BW + 12 * t + 4 * kk + 2 * half, 2)}, v{40 + t} offset:{4096 * kk + 512 * half}')
    A('s_waitcnt vmcnt(3)')
    retry_loop('L_ml', ml, lambda: sentinel_check(['v56', 'v57', 'v58', 'v59'], 'v44'))
    A('v_max_f32 v44, v56, v58')
    A(f'v_max_f32_dpp v44, v44, v44 quad_perm:[1,0,3,2] {DPPF}')
    A(f'v_max_f32_dpp v44, v44, v44 quad_perm:[2,3,0,1] {DPPF}')
    A('v_sub_f32 v56, v56, v44\nv_sub_f32 v58, v58, v44')
    A('v_exp_f32 v56, v56\nv_exp_f32 v58, v58')
    A('v_mul_f32 v44, v56, v57\nv_fmac_f32 v44, v58, v59')
    A(f'v_add_f32_dpp v44, v44, v44 quad_perm:[1,0,3,2] {DPPF}')
    A(f'v_add_f32_dpp v44, v44, v44 quad_perm:[2,3,0,1] {DPPF}')
    A('v_rcp_f32 v44, v44')
    A('v_mul_f32 v44, v56, v44')
    for r in range(4):
        A(f'v_mov_b32_dpp v{56 + r}, v44 quad_perm:[{r},{r},{r},{r}] {DPPF}')
    A('s_waitcnt vmcnt(0) lgkmcnt(0)')
    retry_loop('L_op', ol, lambda: sentinel_check([f'v{GA + r}' for r in range(12)], 'v44'), P['pa'])
    stamp(11)

    def wo_post(t):
        a = AC + 4 * t
        A(f'v_pk_mul_f32 {vr(a, 2)}, {vr(a, 2)}, v[56:57]')
        A(f'v_pk_fma_f32 {vr(a, 2)}, {vr(a + 2, 2)}, v[58:59], {vr(a, 2)}')
        A(f'v_add_f32 v{44 + t}, v{a}, v{a + 1}')

    for t in range(4):
        for kk in range(3):
            a = AC + 4 * t
            A(f'{MF} {vr(a)}, {vr(GA + 4 * kk)}, {vr(BW + 12 * t + 4 * kk)}, {vr(a) if kk else 0}')
    for t in range(4):
        wo_post(t)
    A('v_permlane32_swap_b32 v44, v46')
    A('v_permlane32_swap_b32 v45, v47')
    A('v_permlane16_swap_b32 v44, v45')
    A('v_add_f32 v44, v44, v45')
    A(f'ds_write_b32 v60, v44 offset:{ZB}')
    A('s_waitcnt lgkmcnt(0)')
    A('s_barrier')
    A(f'ds_read_b128 v[44:47], v61 offset:{ZB}')
    A('s_waitcnt lgkmcnt(0)')
    A('v_pk_add_f32 v[44:45], v[44:45], v[46:47]')
    A('v_add_f32 v44, v44, v45')
    A(f'v_mov_b32_dpp v45, v44 quad_perm:[1,1,3,3] {DPPF}')
    A('v_cvt_pk_bf16_f32 v44, v44, v45')
    A(f'v_mov_b32_dpp v45, v44 row_shl:2 {DPPF}')
    A(f'v_mov_b32_dpp v46, v44 row_shl:4 {DPPF}')
    A(f'v_mov_b32_dpp v47, v44 row_shl:6 {DPPF}')
    setexec(0x01010101, 0x01010101)
    A(f'buffer_store_dwordx4 v[44:47], v62, {WS}, {sB_} offen sc1')
    A(f'buffer_store_dwordx4 v[44:47], v62, {WS}, {sC} offen sc1')
    stamp(12)

    A(f's_cmp_lg_u32 {sW}, 0\ns_cbranch_scc1 L_done')
    A(f's_lshr_b32 {sA}, {sT}, 2\ns_lshl3_add_u32 {sA}, {sA}, {sXX}')
    A(f's_cmp_ge_u32 {sA}, 20\ns_cbranch_scc1 L_done')
    A('s_mov_b64 exec, -1')
    A(f's_and_b32 {sB_}, {sT}, 3')
    A(f's_lshl2_add_u32 {sC}, {sA}, {sB_}\ns_lshl_b32 {sC}, {sC}, 4')
    A(f'v_and_b32 v48, 1, {vL}')
    A(f'v_lshrrev_b32 v49, 4, {vL}')
    A(f'v_lshl_add_u32 v49, v48, 2, v49')
    A(f'v_lshl_add_u32 v62, v49, 1, {sC}')
    A(f'buffer_load_ushort v56, v62, {X}, 0 offen')
    A(f'buffer_load_ushort v58, v62, {BI}, 0 offen')
    A(f'v_bfe_u32 v49, {vL}, 1, 3')
    A(f'v_mul_u32_u24 v53, 1280, v49')
    A(f'v_add_u32 v53, v53, v62')
    A(f's_mul_i32 {sC}, {sXX}, 20480\ns_add_u32 {sC}, {sC}, {YP_OFF}\ns_add_u32 {sD_}, {sC}, 10240')
    hl = [f'buffer_load_ushort v50, v53, {WS}, {sC} offen sc1', f'buffer_load_ushort v51, v53, {WS}, {sD_} offen sc1']
    for l in hl:
        A(l)
    A(f'v_lshrrev_b32 v49, 1, {vL}')
    A(f'v_lshlrev_b32 v54, 7, v49')
    A(f'v_lshl_add_u32 v54, v48, 4, v54')
    A(f's_mul_i32 {sA}, {sA}, 12288\ns_lshl_b32 {sB_}, {sB_}, 5\ns_add_u32 {sA}, {sA}, {sB_}\ns_add_u32 {sA}, {sA}, {OUTP_OFF}')
    A(f's_add_u32 {sB_}, {sA}, 4096\ns_add_u32 {sM}, {sA}, 8192')
    A('s_waitcnt vmcnt(0)')
    retry_loop('L_h', hl, lambda: sentinel_check(['v50', 'v51'], 'v44', '0xffff'), P['ph'])
    if P['dc']:
        A(f's_sleep {P["dc"]}')
    GO = 180
    gl = [f'buffer_load_dwordx4 {vr(GO + 4 * n)}, v54, {WS}, {(sA, sB_, sM)[n]} offen sc1' for n in range(3)]
    for l in gl:
        A(l)
    A('v_lshlrev_b32 v50, 16, v50\nv_lshlrev_b32 v51, 16, v51')
    A('v_lshlrev_b32 v56, 16, v56\nv_lshlrev_b32 v58, 16, v58')
    A('v_add_f32 v48, v50, v51')
    for m in ('row_ror:8', 'row_ror:4', 'quad_perm:[2,3,0,1]'):
        A(f'v_add_f32_dpp v48, v48, v48 {m} {DPPF}')
    rbf('v48', 'v48')
    A('v_add_f32 v56, v56, v48')
    rbf('v56', 'v56')
    A('s_waitcnt vmcnt(0)')
    retry_loop('L_out', gl, lambda: sentinel_check([f'v{GO + r}' for r in range(12)], 'v44'), P['pc'])
    stamp(13)
    for n in (1, 2):
        for h in (0, 2):
            A(f'v_pk_add_f32 {vr(40 + h, 2)}, {vr((GO if n == 1 else 40) + h, 2)}, {vr(GO + 4 * n + h, 2)}')
    A(f'v_permlane32_swap_b32 v40, v42')
    A(f'v_permlane32_swap_b32 v41, v43')
    A(f'v_pk_add_f32 v[44:45], v[40:41], v[42:43]')
    A('v_permlane16_swap_b32 v44, v45')
    A('v_add_f32 v44, v44, v45')
    for m in ('row_ror:8', 'row_ror:4', 'quad_perm:[2,3,0,1]'):
        A(f'v_add_f32_dpp v44, v44, v44 {m} {DPPF}')
    rbf('v44', 'v44')
    A('v_add_f32 v44, v44, v58')
    rbf('v44', 'v44')
    A('v_add_f32 v44, v44, v56')
    A('v_cvt_pk_bf16_f32 v44, v44, v44')
    setexec(0x00030003, 0x00030003)
    A(f'buffer_store_short v44, v62, {OUT}, 0 offen')
    stamp(14)
    end()

    A('L_ffn:')
    B1, BX, A2, GY, DZ, DG, DA, CZ, CA, O2 = 96, 116, 136, 160, 180, 184, 188, 192, 196, 200
    issued[:], pos[0], done[0] = save
    del stream[48:]
    stream.extend(('W2', n, 0) for n in range(0 if P['w2_early'] else 5))
    finish_pv()
    A(f'v_and_b32 v47, 15, {vL}')
    A(f'v_lshrrev_b32 v48, 4, {vL}')
    A(f's_mul_i32 {sA}, {sW}, 320')
    A(f'v_lshl_add_u32 v52, v48, 4, {sA}')
    A(f'v_cmp_eq_u32 {sMk}, 0, v47')
    A(f'v_mov_b32 v49, 0x3f803f80')
    A(f'v_cndmask_b32 v49, 0, v49, {sMk}')
    for r in range(20):
        A(f'v_mov_b32 v{BX + r}, v49')
    A(f'v_cmp_eq_u32 vcc, 1, v47')
    A(f'v_cndmask_b32 v57, 0, 2.0, vcc')
    A(f'v_cndmask_b32 v56, 1.0, 0.5, vcc')
    A(f'v_mul_u32_u24 v54, 1280, v47')
    A(f'v_add_u32 v54, v54, v52')
    A(f'v_and_b32 v49, 7, {vL}')
    A(f'v_and_b32 v50, 1, v48')
    A(f'v_lshl_add_u32 v49, v50, 3, v49')
    A(f's_lshl_b32 {sB_}, {sIdx}, 5')
    A(f'v_lshl_add_u32 v53, v49, 1, {sB_}')
    A(f'v_lshlrev_b32 v61, 4, v49')
    A(f'v_lshrrev_b32 v51, 5, {vL}')
    A(f'v_lshl_add_u32 v55, v51, 4, v47')
    A(f's_lshl_b32 {sB_}, {sW}, 2')
    A(f'v_lshl_add_u32 v60, v55, 4, {sB_}')
    A(f'v_bfe_u32 v55, {vL}, 2, 2')
    A(f'v_and_b32 v45, 3, {vL}')
    A(f'v_lshl_add_u32 v40, v48, 3, v55')
    A(f'v_lshlrev_b32 v40, 5, v40')
    A(f'v_lshl_add_u32 v40, v45, 3, v40')
    A(f'v_add_u32 v40, {sD_}, v40')
    A(f'v_lshl_add_u32 v41, v50, 3, v55')
    A(f'v_mul_u32_u24 v41, 1280, v41')
    A(f'v_lshl_add_u32 v41, v51, 5, v41')
    A(f'v_lshl_add_u32 v41, v45, 3, v41')
    A(f'v_add_u32 v41, {sA}, v41')
    rest_weights()
    setexec(0x00020002, 0x00020002)
    for kk in range(5):
        A(f'buffer_load_dwordx4 {vr(BX + 4 * kk)}, v52, {X}, 0 offen offset:{64 * kk}')
    A('s_mov_b64 exec, -1')
    A(f'buffer_load_ushort v58, v53, {BI}, 0 offen')
    A(f'v_bfe_u32 v45, {vL}, 3, 1')
    A(f'v_lshlrev_b32 v62, 6, v45')
    A(f'v_lshl_add_u32 v62, v48, 4, v62')
    A(f's_mul_i32 {sB_}, {sW}, {5 * 12288}\ns_lshl_b32 {sC}, {sIdx}, 7\ns_add_u32 {sB_}, {sB_}, {sC}\ns_add_u32 {sB_}, {sB_}, {OUTP_OFF}')
    A(f'v_add_u32 v62, {sB_}, v62')
    A(f'v_cmp_eq_u32 s[64:65], v45, v51')
    A(f's_mul_i32 {sA}, {sXX}, 20480\ns_add_u32 {sA}, {sA}, {YP_OFF}')
    A('s_movk_i32 s56, 12288\ns_movk_i32 s57, 24576\ns_mov_b32 s58, 36864\ns_mov_b32 s59, 49152')
    A('v_mov_b32 v63, 0')
    for c in (CZ, CA):
        for r in (0, 2, 3):
            A(f'v_mov_b32 v{c + r}, 0')
    A('s_waitcnt vmcnt(0)')
    stamp(10)
    for kk in range(5):
        for half in range(2):
            A(f'ds_read_b64_tr_b16 {vr(B1 + 4 * kk + 2 * half, 2)}, v40 offset:{1024 * kk + 128 * half}')
    yl = [f'buffer_load_dwordx4 {vr(GY + 4 * n)}, v54, {WS}, {sA} offen offset:{64 * n} sc1' for n in range(5)]
    for l in yl:
        A(l)
    A('v_lshlrev_b32 v58, 16, v58')
    A('v_mov_b32 v45, 0xff800000')
    A('v_cndmask_b32 v58, v45, v58, s[64:65]')
    A('s_waitcnt lgkmcnt(0)')
    for kk in range(5):
        A(f'{MF} {vr(DZ)}, {vr(BX + 4 * kk)}, {vr(B1 + 4 * kk)}, {vr(DZ) if kk else 0}')
        A(f'{MF} {vr(DA)}, {vr(BX + 4 * kk)}, {vr(BX + 4 * kk)}, {vr(DA) if kk else 0}')
    A(f'v_mov_b32 v{CZ + 1}, v{DZ + 1}')
    A(f'v_mul_f32 v{CA + 1}, v56, v{DA + 1}')
    A('s_mov_b64 exec, 0xffff')
    A(f'ds_write_b32 v60, v{DZ} offset:{CSB}')
    A('s_mov_b64 exec, -1')
    A('s_waitcnt lgkmcnt(0)')
    A('s_barrier')
    A(f'ds_read_b128 v[44:47], v61 offset:{CSB}')
    for n in range(5):
        for half in range(2):
            A(f'ds_read_b64_tr_b16 {vr(A2 + 4 * n + 2 * half, 2)}, v41 offset:{W2B + 64 * n + 5120 * half}')
    A('s_waitcnt lgkmcnt(0)')
    A('v_pk_add_f32 v[44:45], v[44:45], v[46:47]')
    A('v_add_f32 v59, v44, v45')
    A('s_waitcnt vmcnt(0)')
    retry_loop('L_yp', yl, lambda: sentinel_check([f'v{GY + r}' for r in range(20)], 'v44'), P['pb'])
    stamp(11)
    for kk in range(5):
        A(f'{MF} {vr(DG)}, {vr(GY + 4 * kk)}, {vr(GY + 4 * kk)}, {vr(DG) if kk else 0}')
        A(f'{MF} {vr(DA)}, {vr(GY + 4 * kk)}, {vr(BX + 4 * kk)}, {vr(DA) if kk else vr(CA)}')
    for kk in range(5):
        A(f'{MF} {vr(DZ)}, {vr(GY + 4 * kk)}, {vr(B1 + 4 * kk)}, {vr(DZ) if kk else vr(CZ)}')
    A(f'v_pk_add_f32 {vr(DG, 2)}, {vr(DG, 2)}, {vr(DG + 2, 2)}')
    A(f'v_pk_add_f32 {vr(DA, 2)}, {vr(DA, 2)}, {vr(DA + 2, 2)}')
    A(f'v_add_f32 v45, v{DG}, v{DG + 1}')
    A(f'v_add_f32 v46, v{DA}, v{DA + 1}')
    A('v_fmac_f32 v45, v46, v57')
    A(f'v_pk_add_f32 {vr(DZ, 2)}, {vr(DZ, 2)}, {vr(DZ + 2, 2)}')
    A(f'v_add_f32_dpp v45, v45, v45 row_ror:8 {DPPF}')
    A(f'v_add_f32 v44, v{DZ}, v{DZ + 1}')
    for m in ('row_ror:4', 'quad_perm:[2,3,0,1]', 'quad_perm:[1,0,3,2]'):
        A(f'v_add_f32_dpp v45, v45, v45 {m} {DPPF}')
    A(f'v_cndmask_b32 v45, v45, v46, {sMk}')
    A('v_permlane32_swap_b32 v44, v45')
    A('v_add_f32 v44, v44, v45')
    A('v_mov_b32 v45, v44')
    A('v_permlane16_swap_b32 v44, v45')
    A('v_add_f32 v44, v44, v45')
    A(f'ds_write_b32 v60, v44 offset:{ZB}')
    A('s_waitcnt lgkmcnt(0)')
    A('s_barrier')
    A(f'ds_read_b128 v[48:51], v63 offset:{ZB + 256}')
    A(f'ds_read_b128 v[52:55], v63 offset:{ZB + 272}')
    A(f'ds_read_b128 v[44:47], v61 offset:{ZB}')
    A('s_waitcnt lgkmcnt(0)')
    A('v_pk_add_f32 v[48:49], v[48:49], v[50:51]')
    A('v_pk_add_f32 v[52:53], v[52:53], v[54:55]')
    A('v_pk_add_f32 v[44:45], v[44:45], v[46:47]')
    A('v_add_f32 v48, v48, v49')
    A('v_add_f32 v49, v52, v53')
    A('v_add_f32 v44, v44, v45')
    ln_scalars('v48', 'v49', 'v50', 'v51', 'v52')
    A('v_fma_f32 v44, -v50, v59, v44')
    A('v_mul_f32 v44, v44, v51')
    rbf('v44', 'v44')
    A('v_add_f32 v44, v44, v58')
    rbf('v44', 'v44')
    A('v_max_f32 v44, 0, v44')
    A('v_mul_f32 v44, v44, v44')
    A(f'v_mov_b32_dpp v45, v44 quad_perm:[1,1,3,3] {DPPF}')
    A('v_cvt_pk_bf16_f32 v44, v44, v45')
    A(f'v_mov_b32_dpp v45, v44 row_shl:2 {DPPF}')
    A(f'v_mov_b32_dpp v46, v44 row_shl:4 {DPPF}')
    A(f'v_mov_b32_dpp v47, v44 row_shl:6 {DPPF}')
    for n in range(5):
        A(f'{MF} {vr(O2 + 4 * n)}, {vr(A2 + 4 * n)}, v[44:47], 0')
    setexec(0x01010101, 0x01010101)
    for n in range(5):
        A(f'buffer_store_dwordx4 {vr(O2 + 4 * n)}, v62, {WS}, {"s" + str(55 + n) if n else 0} offen sc1')
    stamp(12)
    end()
    A('L_exit:')
    A('s_endpgm')

    head = open('cdna_kernels/' + NAME + '.s.ref').read().split('; Override launch')[0]
    head += f'; @launch grid=(256,1,1) block=(512,1,1) lds={LDS_BYTES}\n'
    head += f'.amdgcn_target "amdgcn-amd-amdhsa--gfx950"\n.text\n.globl {KN}\n.p2align 8\n.type {KN},@function\n'
    tail = f'''.section .rodata,"a"
.p2align 6
.amdhsa_kernel {KN}
  .amdhsa_next_free_vgpr 256
  .amdhsa_next_free_sgpr 102
  .amdhsa_accum_offset 256
  .amdhsa_group_segment_fixed_size 0
  .amdhsa_kernarg_size 104
  .amdhsa_user_sgpr_count 2
  .amdhsa_user_sgpr_kernarg_segment_ptr 1
  .amdhsa_system_sgpr_workgroup_id_x 1
  .amdhsa_float_denorm_mode_32 3
.end_amdhsa_kernel
'''
    return head + A.finalize() + tail


if __name__ == '__main__':
    out = sys.argv[1]
    kw = {}
    for a in sys.argv[2:]:
        k, v = a.split('=')
        kw[k] = eval(v) if k not in ('nt', 'wnt', 'abl', 'w1nt', 'qnt') else v
    open(out, 'w').write(gen(**kw))
```
